```python
import torch

def _softmax(x, axis=-1):
    return torch.softmax(x, dim=axis)
def _gelu(x):
    return torch.nn.functional.gelu(x, approximate="tanh")
def _silu(x):
    return torch.nn.functional.silu(x)
def _sigmoid(x):
    return torch.sigmoid(x)
def _layernorm(x, axis=-1, eps=1e-5):
    m = x.mean(dim=axis, keepdim=True)
    v = x.var(dim=axis, keepdim=True, unbiased=False)
    return (x - m) / torch.sqrt(v + eps)
def _scatter_add(tgt, idx, src, axis=0):
    return tgt.clone().index_add_(axis, idx, src)
def _segment_sum(src, seg, n):
    out = torch.zeros((n,) + src.shape[1:], dtype=src.dtype)
    return out.index_add_(0, seg, src)
def _pad(x, pw):
    flat = tuple(v for pair in reversed(pw) for v in pair)
    return torch.nn.functional.pad(x, flat)

kernel_name = 'concat_heads__ssm_conv_h3__spectral_fnet__prompt'

def setup_inputs():

    _w = (lambda a: (lambda t: t.to(torch.bfloat16) if t.is_floating_point() else t)(torch.as_tensor(a)))
    def _A_setup():
        B, S, D = 1, 2048, 1024
        ks = 4
        return {
            "q": _w((lambda *s: torch.randn(*s, dtype=torch.bfloat16) * 0.05)(B, S, D)),
            "k": _w((lambda *s: torch.randn(*s, dtype=torch.bfloat16) * 3.2)(B, S, D)),
            "v": _w((lambda *s: torch.randn(*s, dtype=torch.bfloat16) * 3.2)(B, S, D)),
            "shift_k": _w((lambda *s: torch.randn(*s, dtype=torch.bfloat16) * 3.2)(D, ks) * 0.5),
            "ssm_k": _w((lambda *s: torch.randn(*s, dtype=torch.bfloat16) * 3.2)(D, S) * (1.0 / S ** 0.5)),
            "ssm_D": _w((lambda *s: torch.randn(*s, dtype=torch.bfloat16) * 3.2)(D)),
        }
    _A_in = _A_setup()

    def _B_setup():
        B, S, D = 1, 2048, 1024
        ns = torch.arange(S)[:, None] * torch.arange(S)[None, :]
        nd = torch.arange(D)[:, None] * torch.arange(D)[None, :]
        Ws_re = torch.cos(-2.0 * torch.pi * ns / S).to(float)
        Ws_im = torch.sin(-2.0 * torch.pi * ns / S).to(float)
        Wd_re = torch.cos(-2.0 * torch.pi * nd / D).to(float)
        Wd_im = torch.sin(-2.0 * torch.pi * nd / D).to(float)
        return {
            "x": _w((lambda *s: torch.randn(*s, dtype=torch.bfloat16) * 0.05)(B, S, D)),
            "dft_seq_re": _w(Ws_re),
            "dft_seq_im": _w(Ws_im),
            "dft_hid_re": _w(Wd_re),
            "dft_hid_im": _w(Wd_im),
        }
    _B_in = _B_setup()

    return {
        "A_q": _A_in["q"],
        "A_k": _A_in["k"],
        "A_v": _A_in["v"],
        "A_shift_k": _A_in["shift_k"],
        "A_ssm_k": _A_in["ssm_k"],
        "A_ssm_D": _A_in["ssm_D"],
        "B_x": _B_in["x"],
        "B_dft_seq_re": _B_in["dft_seq_re"],
        "B_dft_seq_im": _B_in["dft_seq_im"],
        "B_dft_hid_re": _B_in["dft_hid_re"],
        "B_dft_hid_im": _B_in["dft_hid_im"],
    }

def reference(A_q, A_k, A_v, A_shift_k, A_ssm_k, A_ssm_D, B_x, B_dft_seq_re, B_dft_seq_im, B_dft_hid_re, B_dft_hid_im):
    def _A_ref(q, k, v, shift_k, ssm_k, ssm_D):
        B, S, D = q.shape
        ks = shift_k.shape[-1]
        k_pad = _pad(k, ((0, 0), (ks - 1, 0), (0, 0)))
        k_shift = torch.zeros_like(k)
        for t in range(ks):
            k_shift = k_shift + k_pad[:, t:t + S, :] * shift_k[:, ks - 1 - t][None, None, :]
        kv = k_shift * v
        L = 2 * S
        kv_pad = _pad(kv, ((0, 0), (0, S), (0, 0)))
        kf_pad = _pad(ssm_k, ((0, 0), (0, S)))
        kv_f = (lambda x, axes=(-2,-1): torch.fft.rfft2(x.float(), dim=axes))(kv_pad[:, None, :, :], axes=(1, 2))
        kf_f = (lambda x, axes=(-2,-1): torch.fft.rfft2(x.float(), dim=axes))(kf_pad[:, None, :], axes=(1, 2))
        kf_f = (lambda x, *d: x.permute(*d))(kf_f, 1, 2, 0)
        y_f = kv_f * kf_f[None, :, :, :]
        y = (lambda x, s, axes=(-2,-1): torch.fft.irfft2(x, s=s, dim=axes).to(torch.bfloat16))(y_f, (1, L), axes=(1, 2))[:, 0, :S, :]
        y = y + kv * ssm_D[None, None, :]
        return q * y

    def _B_ref(x, dft_seq_re, dft_seq_im, dft_hid_re, dft_hid_im):
        a = torch.einsum("bsd,ed->bse", x, dft_hid_re)
        b = torch.einsum("bsd,ed->bse", x, dft_hid_im)
        y = torch.einsum("ts,bse->bte", dft_seq_re, a) - torch.einsum("ts,bse->bte", dft_seq_im, b)
        return y

    a = _A_ref(A_q, A_k, A_v, A_shift_k, A_ssm_k, A_ssm_D)
    b = _B_ref(B_x, B_dft_seq_re, B_dft_seq_im, B_dft_hid_re, B_dft_hid_im)
    return torch.concatenate([a, b], axis=-1)
```

```python
import re

class Asm:
    def __init__(self):
        self.lines = []
    def __call__(self, text):
        for ln in text.split("\n"):
            ln = ln.strip()
            if ln: self.lines.append(ln)
    def label(self, name): self.lines.append(name + ":")
    def comment(self, c): self.lines.append("; " + c)
    def extend(self, other): self.lines.extend(other.lines)

def vr(base, n=1):
    return f"v{base}" if n == 1 else f"v[{base}:{base+n-1}]"
def ar(base, n=1):
    return f"a{base}" if n == 1 else f"a[{base}:{base+n-1}]"
def sr(base, n=1):
    return f"s{base}" if n == 1 else f"s[{base}:{base+n-1}]"

_REG = re.compile(r"\b([vas])(\d+)\b|\b([vas])\[(\d+):(\d+)\]|\b(vcc|exec|m0|vcc_lo|vcc_hi|exec_lo|exec_hi|scc)\b")

def regs_of(op):
    out = set()
    for m in _REG.finditer(op):
        if m.group(1): out.add((m.group(1), int(m.group(2))))
        elif m.group(3):
            for i in range(int(m.group(4)), int(m.group(5))+1): out.add((m.group(3), i))
        else:
            n = m.group(6)
            if n.startswith("vcc"): out.add(("x", "vcc"))
            elif n.startswith("exec"): out.add(("x", "exec"))
            else: out.add(("x", n))
    return out

def split_ops(s):
    ops = []; d = 0; cur = ""
    for ch in s:
        if ch == "[": d += 1
        if ch == "]": d -= 1
        if ch == "," and d == 0: ops.append(cur.strip()); cur = ""
        else: cur += ch
    if cur.strip(): ops.append(cur.strip())
    return ops

TRANS = ("v_exp_", "v_log_", "v_rcp_", "v_rsq_", "v_sqrt_", "v_sin_", "v_cos_")

class Ins:
    def __init__(self, text):
        self.text = text
        t = text.split(";")[0].split("//")[0].strip()
        self.is_label = t.endswith(":")
        self.empty = (t == "") or t.startswith(".")
        self.mn = ""; self.ops = []
        self.wr = set(); self.rd = set()
        self.kind = "other"
        if self.is_label or self.empty: return
        parts = t.split(None, 1)
        self.mn = mn = parts[0]
        rest = parts[1] if len(parts) > 1 else ""
        self.ops = ops = split_ops(rest)
        R = [regs_of(o) for o in ops]
        allr = set().union(*R) if R else set()
        if mn.startswith("v_mfma") or mn.startswith("v_smfmac"):
            self.kind = "mfma"; self.wr = R[0]; self.rd = set().union(*R[1:])
            self.srcA = R[1]; self.srcB = R[2]; self.srcC = R[3] if len(R) > 3 else set()
            self.passes = 8 if "32x32" in mn else 4
            if "f32_32x32x2_f32" in mn: self.passes = 16
            if "f32_16x16x4_f32" in mn: self.passes = 8
        elif mn.startswith("v_"):
            self.kind = "valu"
            if mn.startswith("v_cmp"):
                if mn.startswith("v_cmpx"): self.wr = R[0] | {("x","exec")}
                else: self.wr = R[0]
                self.rd = set().union(*R[1:])
            elif mn.startswith("v_readfirstlane") or mn.startswith("v_readlane"):
                self.wr = R[0]; self.rd = set().union(*R[1:]); self.kind = "valu"; self.rdlane = True
            elif mn.startswith("v_permlane") and "swap" in mn:
                self.wr = R[0] | R[1]; self.rd = R[0] | R[1]
            elif mn.startswith(("v_add_co", "v_sub_co", "v_addc_co", "v_subb_co", "v_subrev_co", "v_mad_u64", "v_div_scale")):
                self.wr = R[0] | R[1]; self.rd = set().union(*R[2:])
            elif mn.startswith("v_nop"):
                pass
            else:
                self.wr = R[0]; self.rd = set().union(*R[1:]) if len(R) > 1 else set()
                if mn.startswith(("v_fmac", "v_mac", "v_pk_fmac", "v_dot2c", "v_writelane")) or "dpp" in text.split(";")[0] or "_sdwa" in mn:
                    self.rd |= R[0]
                if mn.startswith("v_cndmask") and len(ops) == 3: self.rd |= {("x","vcc")}
            self.trans = mn.startswith(TRANS)
            self.dpp = ("_dpp" in mn) or ("quad_perm" in t) or ("row_" in t)
            self.perm = mn.startswith("v_permlane")
        elif mn.startswith("ds_"):
            self.kind = "ds"
            if mn.startswith(("ds_read", "ds_bpermute", "ds_permute", "ds_swizzle")) or "_rtn" in mn:
                self.wr = R[0]; self.rd = set().union(*R[1:]) if len(R) > 1 else set()
            else:
                self.rd = allr
        elif mn.startswith(("buffer_", "global_", "flat_", "scratch_")):
            self.kind = "vmem"
            lds = (" lds" in t) or ("_lds_" in mn)
            self.ldsdma = lds
            isload = "_load" in mn
            if isload and not lds:
                self.wr = R[0]; self.rd = set().union(*R[1:]) if len(R) > 1 else set()
            elif "atomic" in mn and (" sc0" in t):
                self.wr = R[0]; self.rd = allr
            else:
                self.rd = allr
            self.widestore = None
            if "store" in mn and ("dwordx3" in mn or "dwordx4" in mn):
                self.widestore = R[1] if mn.startswith(("global_", "flat_")) else R[0]
            if lds: self.rd |= {("x","m0")}
        elif mn.startswith("s_"):
            self.kind = "salu"
            if mn.startswith(("s_cmp", "s_cbranch", "s_branch", "s_waitcnt", "s_nop", "s_barrier", "s_endpgm", "s_sleep", "s_setprio", "s_bitcmp")):
                self.rd = allr
            elif mn.startswith(("s_load", "s_buffer_load", "s_memtime", "s_memrealtime", "s_getpc", "s_getreg")):
                self.wr = R[0] if R else set(); self.rd = set().union(*R[1:]) if len(R) > 1 else set()
            else:
                self.wr = R[0] if R else set(); self.rd = set().union(*R[1:]) if len(R) > 1 else set()
                if "saveexec" in mn: self.wr |= {("x","exec")}
        self.states = 1
        if mn == "s_nop": self.states = int(ops[0], 0) + 1

def is_v(r): return r[0] in ("v", "a")
def is_s(r): return r[0] == "s" or r == ("x","vcc")

def required(prod, cons):
    need = 0
    if prod.kind == "valu":
        wv = {r for r in prod.wr if is_v(r)}
        ws = {r for r in prod.wr if is_s(r)}
        if cons.kind == "mfma" and (wv & cons.rd): need = max(need, 2)
        if cons.kind == "mfma" and ("x","exec") in prod.wr: need = max(need, 4)
        if cons.kind == "valu":
            if getattr(cons, "rdlane", False) and (wv & cons.rd): need = max(need, 1)
            if getattr(cons, "perm", False) and (wv & cons.rd): need = max(need, 2)
            if getattr(cons, "dpp", False) and (wv & cons.rd): need = max(need, 2)
            if getattr(cons, "dpp", False) and ("x","exec") in prod.wr: need = max(need, 5)
            if getattr(prod, "trans", False) and (wv & (cons.rd | cons.wr)) : need = max(need, 1)
            if ws & cons.rd: need = max(need, 2)
            if getattr(cons, "rdlane", False) and (ws & cons.rd): need = max(need, 4)
            if ("x","exec") in prod.wr and (getattr(cons, "rdlane", False) or getattr(cons,"perm",False)): need = max(need, 4)
            if "op_sel" in prod.text or "sdwa" in prod.text:
                if wv & (cons.rd | cons.wr): need = max(need, 1)
        if cons.kind == "vmem" and (ws & cons.rd): need = max(need, 5)
        if cons.kind == "salu" and (ws & cons.rd): need = max(need, 1)
        if cons.kind == "salu" and cons.mn.startswith("s_cbranch_vcc") and ("x","vcc") in prod.wr: need = max(need, 5)
        if cons.kind == "salu" and cons.mn.startswith("s_cbranch_exec") and ("x","exec") in prod.wr: need = max(need, 5)
    elif prod.kind == "mfma":
        p = prod.passes
        tab_use = {2:5, 4:8, 8:12, 16:20}[p]
        tab_ovl = {2:4, 4:6, 8:10, 16:18}[p]
        tab_war = {2:1, 4:3, 8:7, 16:15}[p]
        D = prod.wr
        if cons.kind == "mfma":
            if D & (cons.srcA | cons.srcB): need = max(need, tab_use)
            if D & cons.srcC:
                if not (D == cons.srcC and cons.passes == p): need = max(need, tab_ovl)
            elif D & cons.wr:
                need = max(need, tab_ovl)
        elif cons.kind in ("valu", "ds", "vmem"):
            if D & (cons.rd | cons.wr): need = max(need, tab_use)
            if cons.kind == "valu" and (prod.srcC & cons.wr): need = max(need, tab_war)
    elif prod.kind == "vmem":
        wsd = getattr(prod, "widestore", None)
        if wsd and cons.kind in ("valu", "mfma") and (wsd & cons.wr): need = max(need, 2)
        elif wsd and (wsd & cons.wr): need = max(need, 1)
    elif prod.kind == "ds":
        if prod.mn in ("ds_write_b128", "ds_write_b96") and cons.kind in ("valu","mfma"):
            data = regs_of(prod.ops[1])
            if data & cons.wr: need = max(need, 2)
    elif prod.kind == "salu":
        if ("x","m0") in prod.wr and cons.kind == "vmem" and getattr(cons, "ldsdma", False): need = max(need, 1)
        if ("x","exec") in prod.wr and cons.kind == "valu" and getattr(cons, "dpp", False): need = max(need, 0)
    return need

MAXW = 21
def fix_hazards(lines, verbose=False):
    ins = [Ins(l) for l in lines]
    labels = {i.text.split(";")[0].strip()[:-1]: k for k, i in enumerate(ins) if i.is_label}
    out = []
    nins = 0
    def need_before(hist, cons):
        dist = 0; need = 0
        for p in reversed(hist):
            if p.is_label or p.empty: continue
            r = required(p, cons)
            if r > dist: need = max(need, r - dist)
            dist += p.states
            if dist >= MAXW: break
        return need
    for k, i in enumerate(ins):
        if not (i.is_label or i.empty):
            n = need_before(out[-40:], i)
            if n > 0:
                nins += 1
                while n > 0:
                    m = min(n, 16); out.append(Ins(f"s_nop {m-1}")); n -= m
        out.append(i)
    changed = True
    while changed:
        changed = False
        labels = {i.text.split(";")[0].strip()[:-1]: k for k, i in enumerate(out) if i.is_label}
        for k, i in enumerate(out):
            if i.mn.startswith(("s_cbranch", "s_branch")):
                tgt = i.ops[0].split()[0]
                if tgt not in labels: continue
                t = labels[tgt]
                hist = [x for x in out[max(0, k-40):k+1]]
                j = t + 1; seen = 0; h = list(hist)
                while j < len(out) and seen < MAXW:
                    c = out[j]
                    if not (c.is_label or c.empty):
                        n = need_before(h[-60:], c)
                        if n > 0:
                            m = min(n, 16)
                            out.insert(t + 1, Ins(f"s_nop {m-1}"))
                            nins += 1
                            changed = True
                            break
                        h.append(c); seen += c.states
                        if c.mn in ("s_branch", "s_endpgm"): break
                    j += 1
                if changed: break
    if verbose: print(f"hazard fixer inserted {nins} nop groups")
    return [i.text for i in out]
```

```python
import numpy as np, struct

def bf16_bits(x):
    x = np.asarray(x, dtype=np.float32)
    u = x.view(np.uint32).astype(np.uint64)
    r = (u + 0x7FFF + ((u >> 16) & 1)) >> 16
    return r.astype(np.uint16)

def frag(fn):
    a = np.zeros((64, 8), dtype=np.float64)
    for l in range(64):
        for kk in range(8):
            a[l, kk] = fn(l & 15, l >> 4, kk)
    b = bf16_bits(a.astype(np.float32)).reshape(64, 8)
    return (b[:, 0::2].astype(np.uint32) | (b[:, 1::2].astype(np.uint32) << 16))

def kslot16(g, kk):
    return 4*g + kk if kk < 4 else 16 + 4*g + (kk - 4)

def e2_of(Te, r):
    return 8*(r >> 2) + 4*Te + (r & 3)

tau = 2*np.pi
def build(four=False):
    T = {}
    L = []
    for Te in range(2):
        L.append(frag(lambda c, g, kk: np.cos(tau*kslot16(g,kk)*e2_of(Te,c)/32)))
        L.append(frag(lambda c, g, kk: -np.sin(tau*kslot16(g,kk)*e2_of(Te,c)/32)))
    T["S1B1"] = np.concatenate([x.reshape(-1) for x in L])
    tw = np.zeros((8, 64, 4), dtype=np.float32)
    for Td in range(2):
        for Te in range(2):
            for l in range(64):
                for j in range(4):
                    d1 = 16*Td + 4*(l >> 4) + j; e2 = e2_of(Te, l & 15)
                    tw[(Td*2+Te)*2+0, l, j] = np.cos(tau*d1*e2/1024)
                    tw[(Td*2+Te)*2+1, l, j] = np.sin(tau*d1*e2/1024)
    T["S1TW"] = tw.reshape(-1).view(np.uint32)
    L = []
    for T1 in range(2):
        L.append(frag(lambda c, g, kk: np.cos(tau*kslot16(g,kk)*(16*T1+c)/32)))
        L.append(frag(lambda c, g, kk: np.sin(tau*kslot16(g,kk)*(16*T1+c)/32)))
        L.append(frag(lambda c, g, kk: -np.cos(tau*kslot16(g,kk)*(16*T1+c)/32)))
        if four: L.append(frag(lambda c, g, kk: -np.sin(tau*kslot16(g,kk)*(16*T1+c)/32)))
    T["S1B2"] = np.concatenate([x.reshape(-1) for x in L])
    L = []
    for r in range(4):
        for ks in range(2):
            L.append(frag(lambda c, g, kk: 0.5*np.cos(tau*(16*r+c)*(32*ks+kslot16(g,kk))/64)))
            L.append(frag(lambda c, g, kk: -0.5*np.sin(tau*(16*r+c)*(32*ks+kslot16(g,kk))/64)))
    T["S2A1"] = np.concatenate([x.reshape(-1) for x in L])
    tw = np.zeros((4, 4, 16, 4, 4), dtype=np.float32)
    for r in range(4):
        for w in range(4):
            for i in range(8):
                for g in range(4):
                    for j in range(4):
                        t2 = 16*r + 4*g + j; s1 = 8*w + i
                        tw[r, w, i*2+0, g, j] = np.cos(tau*t2*s1/2048)
                        tw[r, w, i*2+1, g, j] = np.sin(tau*t2*s1/2048)
    T["S2TW"] = tw.reshape(-1).view(np.uint32)
    L = []
    for T1 in range(2):
        L.append(frag(lambda c, g, kk: np.cos(tau*(8*g+kk)*(16*T1+c)/32) + np.sin(tau*(8*g+kk)*(16*T1+c)/32)))
        L.append(frag(lambda c, g, kk: np.sin(tau*(8*g+kk)*(16*T1+c)/32) - np.cos(tau*(8*g+kk)*(16*T1+c)/32)))
    T["S2B2"] = np.concatenate([x.reshape(-1) for x in L])
    return T

def emit_tables(T, order):
    out = []; offs = {}; off = 0
    for name in order:
        a = T[name].astype(np.uint32).reshape(-1)
        offs[name] = off
        for i in range(0, len(a), 8):
            out.append(".long " + ",".join("0x%x" % v for v in a[i:i+8]))
        off += len(a)*4
    return out, offs, off
```

```python
import sys, os
sys.path.insert(0, os.path.dirname(__file__))
from asmlib import *
import tables

NAME = "concat_heads__ssm_conv_h3__spectral_fnet__prompt"
WS_XR, WS_ZT, WS_G = 0, 4 << 20, 8 << 20
SRD3 = "0x20000"

T = tables.build()
TAB_ORDER = ['S1B1', 'S1TW', 'S1B2', 'S2A1', 'S2TW', 'S2B2']
TAB_LINES, TOFF, TAB_BYTES = tables.emit_tables(T, TAB_ORDER)

def srd(a, d, base, nbytes, add=None):
    if add is None:
        a(f"s_mov_b32 s{d}, s{base}")
        a(f"s_mov_b32 s{d+1}, s{base+1}")
    else:
        a(f"s_add_u32 s{d}, s{base}, {add}")
        a(f"s_addc_u32 s{d+1}, s{base+1}, 0")
    a(f"s_mov_b32 s{d+2}, {nbytes}")
    a(f"s_mov_b32 s{d+3}, {SRD3}")

def wg_map_cluster(a, s_cb, s_rb, tmp):
    a(f"s_and_b32 s{s_cb}, s2, 7")
    a(f"s_lshr_b32 s{s_rb}, s2, 3")
    a(f"s_lshr_b32 s{tmp}, s{s_rb}, 4")
    a(f"s_lshl_b32 s{s_cb}, s{s_cb}, 1")
    a(f"s_add_u32 s{s_cb}, s{s_cb}, s{tmp}")
    a(f"s_and_b32 s{s_rb}, s{s_rb}, 15")

def wave_lane(a, s_w):
    a("v_lshrrev_b32 v1, 6, v0")
    a("v_and_b32 v0, 63, v0")
    a(f"v_readfirstlane_b32 s{s_w}, v1")

def exit_guard(a, lbl):
    a("s_cmp_ge_u32 s2, 256")
    a(f"s_cbranch_scc1 {lbl}")

def p1():
    a = Asm()
    exit_guard(a, "L_p1_end")
    a("s_load_dwordx4 s[4:7], s[0:1], 8")
    a("s_load_dwordx2 s[8:9], s[0:1], 24")
    a("s_load_dwordx2 s[10:11], s[0:1], 104")
    wg_map_cluster(a, 12, 13, 14)
    wave_lane(a, 14)
    a("v_and_b32 v2, 7, v0")
    a("v_lshrrev_b32 v3, 3, v0")
    a("s_lshl_b32 s15, s13, 7")
    a("s_lshl_b32 s33, s14, 5")
    a("s_add_u32 s15, s15, s33")
    a("v_lshl_add_u32 v4, v3, 2, s15")
    a("s_lshl_b32 s33, s12, 7")
    a("v_lshl_add_u32 v5, v2, 4, s33")
    a("v_lshl_add_u32 v6, v4, 11, v5")
    a("v_add_u32 v7, 0xffffe800, v6")
    a("v_add_u32 v8, 0xfffff000, v6")
    a("v_add_u32 v9, 0xfffff800, v6")
    a("s_lshl_b32 s33, s12, 9")
    a("v_lshl_add_u32 v10, v2, 6, s33")
    a("s_lshl_b32 s33, s12, 18")
    a("v_lshl_add_u32 v11, v2, 15, s33")
    a("v_lshlrev_b32 v12, 1, v4")
    a("v_sub_u32 v11, v11, v12")
    a("v_add_u32 v11, 4088, v11")
    a("s_waitcnt lgkmcnt(0)")
    srd(a, 16, 4, 4 << 20)
    srd(a, 20, 6, 4 << 20)
    srd(a, 24, 8, 8192)
    srd(a, 28, 10, 4 << 20, add=None)
    a("s_movk_i32 s34, 0x1000")
    KR, VR, WR = 16, 44, 60
    for i, vo in enumerate((7, 8, 9)):
        a(f"buffer_load_dwordx4 {vr(KR+4*i,4)}, v{vo}, s[16:19], 0 offen")
    for t in range(4):
        so = "0" if t < 2 else "s34"
        off = (t & 1) * 2048
        a(f"buffer_load_dwordx4 {vr(KR+12+4*t,4)}, v6, s[16:19], {so} offen offset:{off}")
    for i in range(4):
        a(f"buffer_load_dwordx4 {vr(WR+4*i,4)}, v10, s[24:27], 0 offen offset:{16*i}")
    for t in range(4):
        so = "0" if t < 2 else "s34"
        off = (t & 1) * 2048
        a(f"buffer_load_dwordx4 {vr(VR+4*t,4)}, v6, s[20:23], {so} offen offset:{off}")
    KF, WF, VF, KS, OUT = 76, 90, 98, 106, 114
    a("s_waitcnt vmcnt(0)")
    for m in range(4):
        for i in range(7):
            a(f"v_lshlrev_b32 v{KF+2*i}, 16, v{KR+4*i+m}")
            a(f"v_and_b32 v{KF+2*i+1}, 0xffff0000, v{KR+4*i+m}")
        for h in range(2):
            c = 2*m + h
            a(f"v_lshlrev_b32 v{WF+0+h}, 16, v{WR+2*c}")
            a(f"v_and_b32 v{WF+2+h}, 0xffff0000, v{WR+2*c}")
            a(f"v_lshlrev_b32 v{WF+4+h}, 16, v{WR+2*c+1}")
            a(f"v_and_b32 v{WF+6+h}, 0xffff0000, v{WR+2*c+1}")
        for t in range(4):
            a(f"v_lshlrev_b32 v{VF+2*t}, 16, v{VR+4*t+m}")
            a(f"v_and_b32 v{VF+2*t+1}, 0xffff0000, v{VR+4*t+m}")
        for t in range(4):
            a(f"v_pk_mul_f32 {vr(KS+2*t,2)}, {vr(WF+6,2)}, {vr(KF+2*t,2)}")
        for t in range(4):
            a(f"v_pk_fma_f32 {vr(KS+2*t,2)}, {vr(WF+4,2)}, {vr(KF+2*(t+1),2)}, {vr(KS+2*t,2)}")
        for t in range(4):
            a(f"v_pk_fma_f32 {vr(KS+2*t,2)}, {vr(WF+2,2)}, {vr(KF+2*(t+2),2)}, {vr(KS+2*t,2)}")
        for t in range(4):
            a(f"v_pk_fma_f32 {vr(KS+2*t,2)}, {vr(WF+0,2)}, {vr(KF+2*(t+3),2)}, {vr(KS+2*t,2)}")
        for t in range(4):
            a(f"v_pk_mul_f32 {vr(KS+2*t,2)}, {vr(KS+2*t,2)}, {vr(VF+2*t,2)}")
        for h in range(2):
            c = 2*m + h
            a(f"v_cvt_pk_bf16_f32 v{OUT+2*c}, v{KS+6+h}, v{KS+4+h}")
            a(f"v_cvt_pk_bf16_f32 v{OUT+2*c+1}, v{KS+2+h}, v{KS+0+h}")
    for c in range(8):
        a(f"s_mov_b32 s35, {c*4096}")
        a(f"buffer_store_dwordx2 {vr(OUT+2*c,2)}, v11, s[28:31], s35 offen")
    a("L_p1_end:")
    return a, 136

def p3():
    a = Asm()
    exit_guard(a, "L_p3_end")
    a("s_load_dwordx2 s[4:5], s[0:1], 0")
    a("s_load_dwordx2 s[6:7], s[0:1], 88")
    a("s_load_dwordx2 s[10:11], s[0:1], 104")
    wg_map_cluster(a, 12, 13, 14)
    wave_lane(a, 14)
    a("v_and_b32 v2, 7, v0")
    a("v_lshrrev_b32 v3, 3, v0")
    a("s_lshl_b32 s15, s13, 7")
    a("s_lshl_b32 s33, s14, 5")
    a("s_add_u32 s15, s15, s33")
    a("v_lshl_add_u32 v4, v3, 2, s15")
    a("s_lshl_b32 s33, s12, 7")
    a("v_lshl_add_u32 v5, v2, 4, s33")
    a("v_lshl_add_u32 v6, v4, 11, v5")
    a("v_lshl_add_u32 v7, v4, 12, v5")
    a("s_lshl_b32 s33, s12, 18")
    a("v_lshl_add_u32 v8, v2, 15, s33")
    a("v_lshl_add_u32 v8, v4, 1, v8")
    a("s_waitcnt lgkmcnt(0)")
    srd(a, 16, 4, 4 << 20)
    srd(a, 20, 6, 8 << 20)
    srd(a, 28, 10, 4 << 20, add=WS_ZT)
    a("s_movk_i32 s34, 0x1000")
    ZR, QR, ZF, QF, OUT = 16, 32, 48, 52, 56
    for c in range(8):
        a(f"s_mov_b32 s35, {c*4096}")
        a(f"buffer_load_dwordx2 {vr(ZR+2*c,2)}, v8, s[28:31], s35 offen")
    for t in range(4):
        so = "0" if t < 2 else "s34"
        a(f"buffer_load_dwordx4 {vr(QR+4*t,4)}, v6, s[16:19], {so} offen offset:{(t&1)*2048}")
    a("s_waitcnt vmcnt(0)")
    for t in range(4):
        for m in range(4):
            for h in range(2):
                c = 2*m + h
                src = ZR + 2*c + (t >> 1)
                if t & 1: a(f"v_and_b32 v{ZF+h}, 0xffff0000, v{src}")
                else:     a(f"v_lshlrev_b32 v{ZF+h}, 16, v{src}")
            a(f"v_lshlrev_b32 v{QF}, 16, v{QR+4*t+m}")
            a(f"v_and_b32 v{QF+1}, 0xffff0000, v{QR+4*t+m}")
            a(f"v_pk_mul_f32 {vr(QF,2)}, {vr(QF,2)}, {vr(ZF,2)}")
            a(f"v_cvt_pk_bf16_f32 v{OUT+4*t+m}, v{QF}, v{QF+1}")
        a(f"s_mov_b32 s35, {t*4096}")
        a(f"buffer_store_dwordx4 {vr(OUT+4*t,4)}, v7, s[20:23], s35 offen")
    a("L_p3_end:")
    return a, 80

XSTR = 4640
HOFF = 4 * XSTR
CH_LDS = HOFF + 4224
def p2():
    a = Asm()
    exit_guard(a, "L_p2_end")
    a("s_load_dwordx4 s[4:7], s[0:1], 32")
    a("s_load_dwordx2 s[10:11], s[0:1], 104")
    wg_map_cluster(a, 12, 13, 14)
    wave_lane(a, 14)
    a("s_lshl_b32 s15, s12, 6")
    a("s_lshl_b32 s33, s13, 2")
    a("s_add_u32 s15, s15, s33")
    a("s_add_u32 s15, s15, s14")
    a("s_lshl_b32 s33, s15, 12")
    a(f"s_mul_i32 s36, s14, {CH_LDS}")
    a("v_lshlrev_b32 v2, 4, v0")
    a("s_waitcnt lgkmcnt(0)")
    srd(a, 16, 4, 4096, add="s33")
    srd(a, 20, 10, 4096, add="s33")
    a(f"s_add_u32 s34, s33, {WS_ZT}")
    srd(a, 24, 10, 4096, add="s34")
    a("s_lshl_b32 s34, s15, 1")
    a("s_and_b32 s35, s34, 0xfffffffc")
    a("s_load_dword s37, s[6:7], s35")
    a(f"s_add_u32 m0, s36, {HOFF+128}")
    for it in range(4):
        a(f"buffer_load_dwordx4 v2, s[16:19], 0 offen offset:{it*1024} lds")
    XA, XB, XC = 16, 32, 48
    for it in range(4):
        a(f"buffer_load_dwordx4 {vr(XA+4*it,4)}, v2, s[20:23], 0 offen offset:{it*1024}")
        a(f"buffer_load_dwordx4 {vr(XB+4*it,4)}, v2, s[20:23], 0 offen offset:{it*1024+4}")
        a(f"buffer_load_dwordx4 {vr(XC+4*it,4)}, v2, s[20:23], 0 offen offset:{it*1024+8}")
    a("v_mov_b32 v64, 0\nv_mov_b32 v65, 0\nv_mov_b32 v66, 0\nv_mov_b32 v67, 0")
    a("v_and_b32 v3, 31, v0")
    a("v_lshl_add_u32 v4, v3, 4, s36")
    for m in range(4):
        a(f"ds_write_b128 v4, v[64:67] offset:{m*XSTR+4096}")
    a("v_lshl_add_u32 v4, v3, 2, s36")
    a(f"ds_write_b32 v4, v64 offset:{HOFF}")
    a("v_add_u32 v5, s36, v2")
    a("s_waitcnt vmcnt(0)")
    for it in range(4):
        a(f"ds_write_b128 v5, {vr(XA+4*it,4)} offset:{3*XSTR+it*1024}")
        a(f"ds_write_b128 v5, {vr(XB+4*it,4)} offset:{1*XSTR+it*1024}")
        for i in range(4):
            a(f"v_alignbit_b32 v{68+i}, v{XB+4*it+i}, v{XA+4*it+i}, 16")
        a(f"ds_write_b128 v5, v[68:71] offset:{2*XSTR+it*1024}")
        for i in range(4):
            a(f"v_alignbit_b32 v{72+i}, v{XC+4*it+i}, v{XB+4*it+i}, 16")
        a(f"ds_write_b128 v5, v[72:75] offset:{0*XSTR+it*1024}")
    a("v_and_b32 v6, 3, v0")
    a(f"v_mul_u32_u24 v6, {XSTR}, v6")
    a("v_bfe_u32 v7, v0, 2, 2")
    a("v_lshlrev_b32 v7, 7, v7")
    a("v_sub_u32 v6, v6, v7")
    a("v_lshrrev_b32 v7, 4, v0")
    a("v_lshl_add_u32 v6, v7, 4, v6")
    a(f"s_add_u32 s34, s36, {2*1984-3584}")
    a("v_add_u32 v6, s34, v6")
    a("v_and_b32 v8, 15, v0")
    a("v_lshlrev_b32 v8, 3, v8")
    a("v_lshl_add_u32 v8, v7, 4, v8")
    a(f"s_add_u32 s34, s36, {HOFF+8}")
    a("v_add_u32 v8, s34, v8")
    ACC = 16
    SET = [48, 112]
    def xf(s, u): return SET[s] + 4*u
    def hf(s, J): return SET[s] + 32 + 4*J
    def reads(s):
        L = []
        for u in range(8):
            L.append(f"ds_read_b64 {vr(hf(s,u),2)}, v8 offset:{512*u}")
            L.append(f"ds_read_b64 {vr(hf(s,u)+2,2)}, v8 offset:{512*u+8}")
            L.append(f"ds_read_b128 {vr(xf(s,u),4)}, v6 offset:{512*(7-u)}")
        return L
    def mfmas(s):
        L = []
        for c in range(8):
            pass
        for J in range(8):
            for u in range(8 - J):
                c = u + J
                L.append(f"v_mfma_f32_16x16x32_bf16 {vr(ACC+4*c,4)}, {vr(xf(s,u),4)}, {vr(hf(s,J),4)}, {vr(ACC+4*c,4)}")
        return L
    for i in range(32):
        a(f"v_mov_b32 v{ACC+i}, 0")
    a("s_waitcnt lgkmcnt(0)")
    for r in reads(0): a(r)
    a("v_add_u32 v6, 64, v6\nv_add_u32 v8, 64, v8")
    a("s_mov_b32 s38, 4")
    a("L_p2_loop:")
    for s in range(2):
        a("s_waitcnt lgkmcnt(0)")
        R = reads(1 - s); M = mfmas(s)
        ri = 0
        for k, m in enumerate(M):
            a(m)
            if ri < len(R): a(R[ri]); ri += 1
        a("v_add_u32 v6, 64, v6\nv_add_u32 v8, 64, v8")
    a("s_sub_u32 s38, s38, 1")
    a("s_cmp_lg_u32 s38, 0")
    a("s_cbranch_scc1 L_p2_loop")
    a("s_waitcnt lgkmcnt(0)")
    a("s_and_b32 s34, s15, 1")
    a("s_lshl_b32 s35, s37, 16")
    a("s_and_b32 s37, s37, 0xffff0000")
    a("s_cmp_eq_u32 s34, 0")
    a("s_cselect_b32 s37, s35, s37")
    a("v_lshlrev_b32 v3, 3, v0")
    a(f"s_add_u32 s34, s36, {3*XSTR+4088-3584}")
    a("v_sub_u32 v4, s34, v3")
    KV = 48
    for c in range(8):
        a(f"ds_read_b64 {vr(KV+2*c,2)}, v4 offset:{3584-512*c}")
    a("s_waitcnt lgkmcnt(0)")
    TM = 64
    for c in range(8):
        R0, R1 = KV+2*c, KV+2*c+1
        t = TM + 8*(c & 1)
        a(f"v_and_b32 v{t}, 0xffff0000, v{R1}")
        a(f"v_lshlrev_b32 v{t+1}, 16, v{R1}")
        a(f"v_and_b32 v{t+2}, 0xffff0000, v{R0}")
        a(f"v_lshlrev_b32 v{t+3}, 16, v{R0}")
        for j in range(4):
            a(f"v_fmac_f32 v{ACC+4*c+j}, s37, v{t+j}")
        a(f"v_cvt_pk_bf16_f32 v{t+4}, v{ACC+4*c}, v{ACC+4*c+1}")
        a(f"v_cvt_pk_bf16_f32 v{t+5}, v{ACC+4*c+2}, v{ACC+4*c+3}")
        a(f"buffer_store_dwordx2 {vr(t+4,2)}, v3, s[24:27], 0 offen offset:{512*c}")
    a("L_p2_end:")
    return a, 176

S1_P = 96
S1_SEQ = 32 * S1_P
S1_WAVE = 2 * S1_SEQ
def tab_addr(a, d, off):
    a(f"s_getpc_b64 s[{d}:{d+1}]")
    a(f"s_add_u32 s{d}, s{d}, L_tables-.+{off}+0")
    a(f"s_addc_u32 s{d+1}, s{d+1}, 0")

def s1():
    a = Asm()
    exit_guard(a, "L_s1_end")
    a("s_load_dwordx2 s[4:5], s[0:1], 48")
    a("s_load_dwordx2 s[10:11], s[0:1], 104")
    wave_lane(a, 14)
    tab_addr(a, 6, 0)
    a("s_lshl_b32 s15, s2, 2")
    a("s_add_u32 s15, s15, s14")
    a("s_sub_u32 s33, 2048, s15")
    a("s_cmp_eq_u32 s15, 0")
    a("s_cselect_b32 s33, 1024, s33")
    a("s_cselect_b32 s40, 2.0, 1.0\ns_mov_b32 s41, s40")
    a("s_cselect_b32 s42, 0, 1.0\ns_mov_b32 s43, s42")
    a("s_cselect_b32 s44, 0, 1.0\ns_mov_b32 s45, s44")
    a("s_cselect_b32 s46, 2.0, -1.0\ns_mov_b32 s47, s46")
    a("s_cselect_b32 s48, 0, 1.0\ns_mov_b32 s49, s48")
    a("s_cselect_b32 s50, 0, 1024")
    a(f"s_add_u32 s51, s50, {TOFF['S1B2']+1024}")
    a(f"s_add_u32 s50, s50, {TOFF['S1B2']}")
    a("v_and_b32 v2, 15, v0")
    a("v_lshrrev_b32 v3, 4, v0")
    a("v_lshlrev_b32 v4, 6, v2")
    a("v_lshl_add_u32 v4, v3, 4, v4")
    a("v_lshlrev_b32 v5, 4, v0")
    a("s_waitcnt lgkmcnt(0)")
    srd(a, 16, 4, 4 << 20)
    srd(a, 20, 6, TAB_BYTES)
    srd(a, 24, 10, 4 << 20, add=WS_G)
    a("s_lshl_b32 s34, s15, 11")
    a("s_lshl_b32 s35, s33, 11")
    XS, XP = 16, 24
    for Tt in range(2):
        a(f"buffer_load_dwordx4 {vr(XS+4*Tt,4)}, v4, s[16:19], s34 offen offset:{1024*Tt}")
    for Tt in range(2):
        a(f"buffer_load_dwordx4 {vr(XP+4*Tt,4)}, v4, s[16:19], s35 offen offset:{1024*Tt}")
    B1, TW, B2U, B2W = 32, 48, 80, 96
    for f in range(4):
        a(f"s_mov_b32 s36, {TOFF['S1B1']+1024*f}")
        a(f"buffer_load_dwordx4 {vr(B1+4*f,4)}, v5, s[20:23], s36 offen")
    for m in range(8):
        a(f"s_mov_b32 s36, {TOFF['S1TW']+1024*m}")
        a(f"buffer_load_dwordx4 {vr(TW+4*m,4)}, v5, s[20:23], s36 offen")
    for T1 in range(2):
        for k in range(2):
            a(f"s_mov_b32 s36, {TOFF['S1B2']+3072*T1+1024*k}")
            a(f"buffer_load_dwordx4 {vr(B2U+8*T1+4*k,4)}, v5, s[20:23], s36 offen")
    for T1 in range(2):
        for k in range(2):
            a(f"s_add_u32 s36, s{50+k}, {3072*T1}")
            a(f"buffer_load_dwordx4 {vr(B2W+8*T1+4*k,4)}, v5, s[20:23], s36 offen")
    a(f"s_mul_i32 s37, s14, {S1_WAVE}")
    a(f"v_mul_u32_u24 v6, {S1_P}, v2")
    a("v_lshl_add_u32 v6, v3, 4, v6")
    a("v_add_u32 v6, s37, v6")
    a("v_bfe_u32 v7, v0, 2, 2")
    a("v_lshl_add_u32 v7, v3, 2, v7")
    a(f"v_mul_u32_u24 v7, {S1_P}, v7")
    a("v_and_b32 v8, 3, v0")
    a("v_lshl_add_u32 v7, v8, 3, v7")
    a("v_add_u32 v7, s37, v7")
    a("s_waitcnt vmcnt(20)")
    U, W_, F = 112, 120, 128
    for Tt in range(2):
        for m in range(4):
            xs, xp = XS+4*Tt+m, XP+4*Tt+m
            a(f"v_lshlrev_b32 v{F}, 16, v{xs}\nv_and_b32 v{F+1}, 0xffff0000, v{xs}")
            a(f"v_lshlrev_b32 v{F+2}, 16, v{xp}\nv_and_b32 v{F+3}, 0xffff0000, v{xp}")
            a(f"v_pk_mul_f32 {vr(F+4,2)}, s[40:41], {vr(F,2)}")
            a(f"v_pk_mul_f32 {vr(F+6,2)}, s[44:45], {vr(F,2)}")
            a(f"v_pk_fma_f32 {vr(F+4,2)}, s[42:43], {vr(F+2,2)}, {vr(F+4,2)}")
            a(f"v_pk_fma_f32 {vr(F+6,2)}, s[46:47], {vr(F+2,2)}, {vr(F+6,2)}")
            a(f"v_cvt_pk_bf16_f32 v{U+4*Tt+m}, v{F+4}, v{F+5}")
            a(f"v_cvt_pk_bf16_f32 v{W_+4*Tt+m}, v{F+6}, v{F+7}")
    for Tt in range(2):
        a(f"ds_write_b128 v6, {vr(U+4*Tt,4)} offset:{Tt*16*S1_P}")
        a(f"ds_write_b128 v6, {vr(W_+4*Tt,4)} offset:{S1_SEQ+Tt*16*S1_P}")
    a("s_waitcnt lgkmcnt(0)")
    AF = 136
    for X in range(2):
        for Td in range(2):
            for h in range(2):
                a(f"ds_read_b64_tr_b16 {vr(AF+8*X+4*Td+2*h,2)}, v7 offset:{X*S1_SEQ+h*16*S1_P+32*Td}")
    a("s_waitcnt vmcnt(0) lgkmcnt(0)")
    C1 = 152
    def c1(X, Td, Te, c): return C1 + (((X*2+Td)*2+Te)*2+c)*4
    for X in range(2):
        for Td in range(2):
            for Te in range(2):
                for c in range(2):
                    a(f"v_mfma_f32_16x16x32_bf16 {vr(c1(X,Td,Te,c),4)}, {vr(AF+8*X+4*Td,4)}, {vr(B1+8*Te+4*c,4)}, 0")
    ZA = 216
    def za(X, Te, c): return ZA + ((X*2+Te)*2+c)*4
    TT = 112
    for X in range(2):
        for Td in range(2):
            for Te in range(2):
                cr, ci = c1(X,Td,Te,0), c1(X,Td,Te,1)
                tc, ts = TW + ((Td*2+Te)*2)*4, TW + ((Td*2+Te)*2+1)*4
                for hh in range(2):
                    o = 2*hh
                    a(f"v_pk_mul_f32 {vr(TT+o,2)}, {vr(cr+o,2)}, {vr(tc+o,2)}")
                    a(f"v_pk_mul_f32 {vr(TT+4+o,2)}, {vr(ci+o,2)}, {vr(tc+o,2)}")
                    a(f"v_pk_fma_f32 {vr(TT+o,2)}, {vr(ci+o,2)}, {vr(ts+o,2)}, {vr(TT+o,2)}")
                    a(f"v_pk_fma_f32 {vr(TT+4+o,2)}, {vr(cr+o,2)}, {vr(ts+o,2)}, {vr(TT+4+o,2)} neg_lo:[1,0,0] neg_hi:[1,0,0]")
                for hh in range(2):
                    a(f"v_cvt_pk_bf16_f32 v{za(X,Te,0)+2*Td+hh}, v{TT+2*hh}, v{TT+2*hh+1}")
                    a(f"v_cvt_pk_bf16_f32 v{za(X,Te,1)+2*Td+hh}, v{TT+4+2*hh}, v{TT+4+2*hh+1}")
    C2 = 152
    def c2(X, T1, Te): return C2 + ((X*2+T1)*2+Te)*4
    for X in range(2):
        Bc = B2U if X == 0 else B2W
        for T1 in range(2):
            for Te in range(2):
                a(f"v_mfma_f32_16x16x32_bf16 {vr(c2(X,T1,Te),4)}, {vr(za(X,Te,0),4)}, {vr(Bc+8*T1,4)}, 0")
                a(f"v_mfma_f32_16x16x32_bf16 {vr(c2(X,T1,Te),4)}, {vr(za(X,Te,1),4)}, {vr(Bc+8*T1+4,4)}, {vr(c2(X,T1,Te),4)}")
    a("v_lshlrev_b32 v9, 1, v2")
    a("v_lshrrev_b32 v10, 1, v3")
    a("v_add_u32 v9, v9, v10")
    a("v_lshlrev_b32 v9, 16, v9")
    a("v_and_b32 v10, 1, v3")
    a("v_lshl_add_u32 v9, v10, 4, v9")
    a("s_lshl_b32 s34, s15, 5")
    a("s_lshl_b32 s35, s33, 5")
    O = 184
    for T1 in range(2):
        for Te in range(2):
            A_, B_ = c2(0,T1,Te), c2(1,T1,Te)
            for hh in range(2):
                o = 2*hh
                a(f"v_pk_fma_f32 {vr(TT+o,2)}, s[48:49], {vr(B_+o,2)}, {vr(A_+o,2)} neg_lo:[0,1,0] neg_hi:[0,1,0]")
                a(f"v_pk_fma_f32 {vr(TT+4+o,2)}, s[48:49], {vr(A_+o,2)}, {vr(B_+o,2)}")
            for hh in range(2):
                a(f"v_cvt_pk_bf16_f32 v{O+8*T1+2*Te+hh}, v{TT+2*hh}, v{TT+2*hh+1}")
                a(f"v_cvt_pk_bf16_f32 v{O+8*T1+4+2*Te+hh}, v{TT+4+2*hh}, v{TT+4+2*hh+1}")
        a(f"s_add_u32 s36, s34, {T1<<21}")
        a(f"buffer_store_dwordx4 {vr(O+8*T1,4)}, v9, s[24:27], s36 offen")
        a(f"s_add_u32 s36, s35, {T1<<21}")
        a(f"buffer_store_dwordx4 {vr(O+8*T1+4,4)}, v9, s[24:27], s36 offen")
    a("L_s1_end:")
    return a, 248

S2_PIECE = 1056
S2_Z = 64 * S2_PIECE
S2_LDS = S2_Z + 32768
def s2():
    a = Asm()
    exit_guard(a, "L_s2_end")
    a("s_load_dwordx2 s[4:5], s[0:1], 88")
    a("s_load_dwordx2 s[10:11], s[0:1], 104")
    wave_lane(a, 14)
    tab_addr(a, 6, 0)
    a("s_and_b32 s12, s2, 7\ns_lshr_b32 s13, s2, 3\ns_lshl_b32 s12, s12, 3\ns_lshr_b32 s33, s13, 2\ns_add_u32 s12, s12, s33\ns_and_b32 s13, s13, 3")
    a("v_lshlrev_b32 v5, 4, v0")
    a("s_waitcnt lgkmcnt(0)")
    a("s_lshl_b32 s33, s12, 16")
    a(f"s_add_u32 s33, s33, {WS_G}")
    srd(a, 16, 10, 65536, add="s33")
    srd(a, 20, 6, TAB_BYTES)
    srd(a, 24, 4, 8 << 20)
    a(f"s_mul_i32 s34, s14, {16*S2_PIECE}")
    a("s_lshl_b32 s35, s14, 14")
    for i in range(16):
        a(f"s_add_u32 m0, s34, {i*S2_PIECE}")
        a(f"s_add_u32 s36, s35, {i*1024}")
        a(f"buffer_load_dwordx4 v5, s[16:19], s36 offen lds")
    A1, TW, B2 = 16, 32, 96
    a(f"s_lshl_b32 s36, s13, 12")
    a(f"s_add_u32 s36, s36, {TOFF['S2A1']}")
    for f in range(4):
        a(f"buffer_load_dwordx4 {vr(A1+4*f,4)}, v5, s[20:23], s36 offen offset:{1024*f}")
    a("v_lshrrev_b32 v3, 4, v0")
    a("v_lshlrev_b32 v6, 4, v3")
    a("s_lshl_b32 s36, s13, 12\ns_lshl_b32 s37, s14, 10\ns_add_u32 s36, s36, s37")
    a(f"s_add_u32 s36, s36, {TOFF['S2TW']}")
    for m in range(16):
        a(f"buffer_load_dwordx4 {vr(TW+4*m,4)}, v6, s[20:23], s36 offen offset:{64*m}")
    a(f"s_mov_b32 s36, {TOFF['S2B2']}")
    for f in range(4):
        a(f"buffer_load_dwordx4 {vr(B2+4*f,4)}, v5, s[20:23], s36 offen offset:{1024*f}")
    a("v_bfe_u32 v7, v0, 2, 2")
    a("v_lshl_add_u32 v7, v3, 2, v7")
    a(f"v_mul_u32_u24 v7, {S2_PIECE}, v7")
    a("v_and_b32 v8, 3, v0")
    a("v_lshl_add_u32 v7, v8, 3, v7")
    a("s_lshl_b32 s37, s14, 8")
    a("v_add_u32 v7, s37, v7")
    a("s_waitcnt vmcnt(0)")
    a("s_barrier")
    ACC = 112
    BF = 176
    def acc(i, c): return ACC + (i*2+c)*4
    def rd(i):
        b = BF + 8*(i & 1)
        for ks in range(2):
            for h in range(2):
                a(f"ds_read_b64_tr_b16 {vr(b+4*ks+2*h,2)}, v7 offset:{(32*ks+16*h)*S2_PIECE+i*32}")
    rd(0)
    for i in range(8):
        if i < 7:
            rd(i+1); a("s_waitcnt lgkmcnt(4)")
        else:
            a("s_waitcnt lgkmcnt(0)")
        b = BF + 8*(i & 1)
        for c in range(2):
            a(f"v_mfma_f32_16x16x32_bf16 {vr(acc(i,c),4)}, {vr(A1+4*c,4)}, {vr(b,4)}, 0")
        for c in range(2):
            a(f"v_mfma_f32_16x16x32_bf16 {vr(acc(i,c),4)}, {vr(A1+8+4*c,4)}, {vr(b+4,4)}, {vr(acc(i,c),4)}")
    TT = 192
    for i in range(8):
        cr, ci = acc(i,0), acc(i,1)
        tc, ts = TW + 8*i, TW + 8*i + 4
        for hh in range(2):
            o = 2*hh
            a(f"v_pk_mul_f32 {vr(TT+o,2)}, {vr(cr+o,2)}, {vr(tc+o,2)}")
            a(f"v_pk_mul_f32 {vr(TT+4+o,2)}, {vr(ci+o,2)}, {vr(tc+o,2)}")
            a(f"v_pk_fma_f32 {vr(TT+o,2)}, {vr(ci+o,2)}, {vr(ts+o,2)}, {vr(TT+o,2)}")
            a(f"v_pk_fma_f32 {vr(ci+o,2)}, {vr(cr+o,2)}, {vr(ts+o,2)}, {vr(TT+4+o,2)} neg_lo:[1,0,0] neg_hi:[1,0,0]")
            a(f"v_mov_b32 v{cr+o}, v{TT+o}\nv_mov_b32 v{cr+o+1}, v{TT+o+1}")
    a("v_and_b32 v2, 15, v0")
    a("v_lshlrev_b32 v9, 13, v3")
    a("v_lshl_add_u32 v9, v2, 4, v9")
    a(f"s_add_u32 s37, s37, {S2_Z}")
    a("v_add_u32 v9, s37, v9")
    PK = 200
    for j in range(4):
        for c in range(2):
            p = PK + 4*((j*2+c) & 1)
            for ip in range(4):
                a(f"v_cvt_pk_bf16_f32 v{p+ip}, v{acc(2*ip,c)+j}, v{acc(2*ip+1,c)+j}")
            a(f"ds_write_b128 v9, {vr(p,4)} offset:{j*2048+c*1024}")
    a("s_waitcnt lgkmcnt(0)")
    a("s_barrier")
    a("s_lshl_b32 s37, s14, 13")
    a(f"s_add_u32 s37, s37, {S2_Z}")
    a("v_add_u32 v10, s37, v5")
    ZF = 16
    for jj in range(4):
        for c in range(2):
            a(f"ds_read_b128 {vr(ZF+(jj*2+c)*4,4)}, v10 offset:{jj*2048+c*1024}")
    a("v_lshlrev_b32 v11, 18, v2")
    a("v_lshl_add_u32 v11, v3, 3, v11")
    a("s_lshl_b32 s33, s13, 4\ns_lshl_b32 s34, s14, 2\ns_add_u32 s33, s33, s34\ns_lshl_b32 s33, s33, 12")
    a("s_lshl_b32 s34, s12, 5\ns_add_u32 s33, s33, s34\ns_add_u32 s33, s33, 2048")
    a("s_waitcnt lgkmcnt(0)")
    C2 = 48
    for jj in range(4):
        for T1 in range(2):
            d = C2 + (jj*2+T1)*4
            a(f"v_mfma_f32_16x16x32_bf16 {vr(d,4)}, {vr(ZF+(jj*2)*4,4)}, {vr(B2+8*T1,4)}, 0")
            a(f"v_mfma_f32_16x16x32_bf16 {vr(d,4)}, {vr(ZF+(jj*2+1)*4,4)}, {vr(B2+8*T1+4,4)}, {vr(d,4)}")
    O = 80
    for jj in range(4):
        for T1 in range(2):
            d = C2 + (jj*2+T1)*4; o = O + 2*(jj*2+T1)
            a(f"v_cvt_pk_bf16_f32 v{o}, v{d}, v{d+1}")
            a(f"v_cvt_pk_bf16_f32 v{o+1}, v{d+2}, v{d+3}")
            a(f"s_add_u32 s34, s33, {jj*4096 + T1*(16*64*4096)}")
            a(f"buffer_store_dwordx2 {vr(o,2)}, v11, s[24:27], s34 offen")
    a("L_s2_end:")
    return a, 208

def kernel_text(name, a, vgprs, sgprs=64):
    lines = fix_hazards(a.lines)
    acc = (vgprs + 3)//4*4
    t = [f".globl {name}", ".p2align 8", f".type {name},@function", f"{name}:"] + lines + ["s_endpgm"]
    desc = [".p2align 6", f".amdhsa_kernel {name}", f"  .amdhsa_next_free_vgpr {vgprs}", f"  .amdhsa_next_free_sgpr {sgprs}",
            f"  .amdhsa_accum_offset {acc}", "  .amdhsa_group_segment_fixed_size 0", "  .amdhsa_kernarg_size 112",
            "  .amdhsa_user_sgpr_count 2", "  .amdhsa_user_sgpr_kernarg_segment_ptr 1", "  .amdhsa_system_sgpr_workgroup_id_x 1",
            "  .amdhsa_float_denorm_mode_32 3", ".end_amdhsa_kernel"]
    return t, desc

def main(out_path, order=None):
    specs = [("p1_kernel", p1, 0), ("s1_kernel", s1, 4*S1_WAVE), ("p2_kernel", p2, 4*CH_LDS), ("s2_kernel", s2, S2_LDS), ("p3_kernel", p3, 0)]
    hdr = open(os.path.join(os.path.dirname(__file__), "header.txt")).read().rstrip("\n").split("\n")
    L = list(hdr)
    for n, f, lds in specs:
        L.append(f"; @launch kernel={n} grid=(256,1,1) block=(256,1,1) lds={lds}")
    L += ['.amdgcn_target "amdgcn-amd-amdhsa--gfx950"', ".text"]
    descs = []
    for n, f, lds in specs:
        a, v = f()
        t, d = kernel_text(n, a, v)
        L += t; descs += d
    L += [".p2align 8", ".type L_tables,@object", "L_tables:"] + TAB_LINES + [".size L_tables, .-L_tables"]
    L += ['.section .rodata,"a"'] + descs
    open(out_path, "w").write("\n".join(L) + "\n")

if __name__ == "__main__":
    main(sys.argv[1] if len(sys.argv) > 1 else f"cdna_kernels/{NAME}.s")
```

```python
import sys, os
sys.path.insert(0, os.path.dirname(__file__))
from asmlib import *
import tables

NAME = "concat_heads__ssm_conv_h3__spectral_fnet__prompt"
KNAME = NAME + "_kernel"
WS_XR, WS_ZT, WS_G, WS_FL = 0, 4 << 20, 8 << 20, 12 << 20
FL_EPOCH, FL_A, FL_F1, FL_F3, FL_F2 = 0, 4096, 8192, 12288, 16384
SRD3 = "0x20000"
PROF = os.environ.get("PROF") == "1"
STAMPS = set(os.environ.get("STAMPS", "entry,kv,mode,s1,f1,preloop,loop,zst,s2b,o2,fin").split(","))
FORCE_GLOBAL = os.environ.get("FORCE_GLOBAL") == "1"

T = tables.build()
TAB_ORDER = ['S1B1', 'S1TW', 'S1B2', 'S2A1', 'S2TW', 'S2B2']
TAB_LINES, TOFF, TAB_BYTES = tables.emit_tables(T, TAB_ORDER)

XSTR = 4640
H_S = 2 * XSTR
H_N = H_S + 4224
CH_LDS = H_N + 4160
R2 = 4 * CH_LDS
S1_P = 96; S1_SEQ = 32 * S1_P; S1_WAVE = 2 * S1_SEQ
R2_S1TAB = R2 + 4 * S1_WAVE
S2_PIECE = 1056
R3 = R2 + 64 * S2_PIECE
LDS_CNT = R3 + 12288
LDS_BYTES = LDS_CNT + 64
ZBUF = 0
JJ_SIG = int(os.environ.get('JJ_SIG', 3)); JJ_POLL = int(os.environ.get('JJ_POLL', 6))

S_Q, S_K, S_V, S_SK, S_H, S_D, S_X = 4, 6, 8, 10, 12, 14, 16
S_TABP = 18
S_OUT, S_WS = 20, 22
S_CB, S_RB, S_W, S_TAG, S_MODE, S_CH = 24, 25, 26, 27, 28, 29
S_XCC, S_SIG, S_P, S_LB, S_DV, S_E, S_R = 30, 31, 32, 33, 34, 35, 3
RA, RB, RC, RD, RE, R_FL, R_TAB = 36, 40, 44, 48, 52, 56, 60
T0, T1, T2, T3, T4, T5 = 64, 65, 66, 67, 68, 69
C0 = 70
ST0 = 80
V_Q = 240
V_ZOFF, V_OOFF, V_QOFF, V_FOFF, V_L16 = 232, 233, 234, 235, 236
V_DUM = 228

class K:
    def __init__(self):
        self.a = Asm(); self.tail = Asm()
        self.vm = []; self.nlab = 0; self.nstamp = 0; self.names = []
    def __call__(self, t): self.a(t)
    def lab(self, p="L"):
        self.nlab += 1; return f"{p}_{self.nlab}"
    def vmem(self, text, tag, optional=False):
        self.a(text); self.vm.append((tag, optional))
    def wait(self, tag, lgkm=None):
        idx = max(i for i, (t, o) in enumerate(self.vm) if t == tag)
        n = sum(1 for (t, o) in self.vm[idx+1:] if not o)
        assert n <= 63, n
        self.a(f"s_waitcnt vmcnt({n})" + (f" lgkmcnt({lgkm})" if lgkm is not None else ""))
    def srd(self, d, base, nbytes, add=None):
        a = self.a
        if add is None:
            a(f"s_mov_b32 s{d}, s{base}\ns_mov_b32 s{d+1}, s{base+1}")
        else:
            a(f"s_add_u32 s{d}, s{base}, {add}\ns_addc_u32 s{d+1}, s{base+1}, 0")
        a(f"s_mov_b32 s{d+2}, {nbytes}\ns_mov_b32 s{d+3}, {SRD3}")
    def stamp(self, name=""):
        if PROF and name in STAMPS:
            self.names.append(name)
            assert self.nstamp < 11
            self.a(f"s_memtime s[{ST0+2*self.nstamp}:{ST0+2*self.nstamp+1}]")
            self.nstamp += 1
    def dual(self, fn, tag):
        lg, lj = self.lab("Lg"), self.lab("Lj")
        a = self.a
        a(f"s_cmp_eq_u32 s{S_MODE}, 0")
        a(f"s_cbranch_scc1 {lg}")
        for t in fn(""):
            if t.startswith(("buffer_", "global_")): self.vmem(t, tag)
            else: a(t)
        a(f"{lj}:")
        self.tail(f"{lg}:")
        for t in fn(" sc1"): self.tail(t)
        self.tail(f"s_branch {lj}")
    def poll(self, loads, cmps, sleep=1):
        a = self.a
        lp, ok = self.lab("Lp"), self.lab("Lok")
        a(f"s_mov_b32 s{T4}, 0x100000")
        a(f"{lp}:")
        for t in loads: a(t)
        a("s_waitcnt vmcnt(0)")
        for t in cmps: a(t)
        a(f"s_cbranch_vccz {ok}")
        a(f"s_sleep {sleep}")
        a(f"s_sub_u32 s{T4}, s{T4}, 1")
        a(f"s_cmp_lg_u32 s{T4}, 0")
        a(f"s_cbranch_scc1 {lp}")
        a(f"{ok}:")
        self.vm.append(("_poll", True))

def lane0(k, body):
    a = k.a
    a("s_mov_b64 exec, 1")
    for t in body: a(t)
    a("s_mov_b64 exec, -1")

def build():
    k = K(); a = k.a
    a("s_cmp_ge_u32 s2, 256")
    a("s_cbranch_scc1 L_end")
    if PROF: a(f"s_memrealtime s[78:79]")
    k.stamp("entry")
    a("s_load_dwordx16 s[4:19], s[0:1], 0")
    a("s_load_dwordx2 s[20:21], s[0:1], 88")
    a("s_load_dwordx2 s[22:23], s[0:1], 104")
    a(f"s_getreg_b32 s{S_XCC}, hwreg(HW_REG_XCC_ID, 0, 4)")
    a(f"s_and_b32 s{S_CB}, s2, 7\ns_lshr_b32 s{S_RB}, s2, 3\ns_lshr_b32 s{T0}, s{S_RB}, 4")
    a(f"s_lshl_b32 s{S_E}, s{S_CB}, 3\ns_lshr_b32 s{T1}, s{S_RB}, 2\ns_add_u32 s{S_E}, s{S_E}, s{T1}\ns_and_b32 s{S_R}, s{S_RB}, 3")
    a(f"s_lshl_b32 s{S_CB}, s{S_CB}, 1\ns_add_u32 s{S_CB}, s{S_CB}, s{T0}\ns_and_b32 s{S_RB}, s{S_RB}, 15")
    a("v_lshrrev_b32 v1, 6, v0\nv_and_b32 v0, 63, v0")
    a(f"v_readfirstlane_b32 s{S_W}, v1")
    a("v_and_b32 v2, 7, v0\nv_lshrrev_b32 v3, 3, v0")
    a(f"s_lshl_b32 s{T0}, s{S_RB}, 7\ns_lshl_b32 s{T1}, s{S_W}, 5\ns_add_u32 s{T0}, s{T0}, s{T1}")
    a(f"v_lshl_add_u32 v4, v3, 2, s{T0}")
    a(f"s_lshl_b32 s{T1}, s{S_CB}, 7")
    a(f"v_lshl_add_u32 v5, v2, 4, s{T1}")
    a(f"v_lshl_add_u32 v{V_QOFF}, v4, 11, v5")
    a(f"v_add_u32 v7, 0xffffe800, v{V_QOFF}\nv_add_u32 v8, 0xfffff000, v{V_QOFF}\nv_add_u32 v9, 0xfffff800, v{V_QOFF}")
    a(f"s_lshl_b32 s{T1}, s{S_CB}, 9")
    a(f"v_lshl_add_u32 v10, v2, 6, s{T1}")
    a(f"s_lshl_b32 s{T1}, s{S_CB}, 18")
    a(f"v_lshl_add_u32 v11, v2, 15, s{T1}")
    a("v_lshlrev_b32 v12, 1, v4")
    a(f"v_add_u32 v{V_ZOFF}, v11, v12")
    a("v_sub_u32 v13, v11, v12\nv_add_u32 v13, 4088, v13")
    a(f"v_lshl_add_u32 v{V_OOFF}, v4, 12, v5")
    a(f"v_lshlrev_b32 v{V_L16}, 4, v0")
    a(f"s_lshl_b32 s{T1}, s{S_CB}, 18\ns_lshl_b32 s{T2}, s{S_RB}, 8\ns_sub_u32 s{T1}, s{T1}, s{T2}")
    a(f"s_and_b32 s{T2}, s{S_W}, 1\ns_lshl_b32 s{T2}, s{T2}, 7\ns_add_u32 s{T1}, s{T1}, s{T2}\ns_add_u32 s{T1}, s{T1}, 3840")
    a(f"v_lshl_add_u32 v14, v0, 12, s{T1}")
    a(f"s_lshl_b32 s{T1}, s{S_CB}, 8")
    a(f"v_lshl_add_u32 v{V_FOFF}, v0, 2, s{T1}")
    a(f"s_getpc_b64 s[{C0}:{C0+1}]")
    a("L_pc0:")
    a(f"s_lshr_b32 s{T1}, s2, 3\ns_lshl_b32 s{T1}, s{T1}, 2\ns_add_u32 s{T1}, s{T1}, s{S_W}\ns_and_b32 s{T1}, s{T1}, 31\ns_lshl_b32 s{T1}, s{T1}, 10")
    a(f"s_min_u32 s{T1}, s{T1}, L_code_end-L_pc0-1024")
    a(f"s_add_u32 s{C0}, s{C0}, s{T1}\ns_addc_u32 s{C0+1}, s{C0+1}, 0")
    a(f"s_lshl_b32 s{S_SIG}, s2, 2\ns_add_u32 s{S_SIG}, s{S_SIG}, s{S_W}")
    a(f"s_lshl_b32 s{S_CH}, s{S_CB}, 6\ns_lshl_b32 s{T1}, s{S_RB}, 2\ns_add_u32 s{S_CH}, s{S_CH}, s{T1}\ns_add_u32 s{S_CH}, s{S_CH}, s{S_W}")
    a(f"s_mul_i32 s{S_LB}, s{S_W}, {CH_LDS}")
    a("s_waitcnt lgkmcnt(0)")
    k.stamp("karg")
    a(f"s_getpc_b64 s[{S_TABP}:{S_TABP+1}]")
    a(f"s_add_u32 s{S_TABP}, s{S_TABP}, L_tables-.\ns_addc_u32 s{S_TABP+1}, s{S_TABP+1}, 0")
    k.srd(RA, S_K, 4 << 20); k.srd(RB, S_V, 4 << 20)
    a(f"s_movk_i32 s{T4}, 0x1000")
    KR, VR, WR = 16, 44, 60
    for i, vo in enumerate((7, 8, 9)):
        k.vmem(f"buffer_load_dwordx4 {vr(KR+4*i,4)}, v{vo}, {sr(RA,4)}, 0 offen", "k")
    for t in range(4):
        so = "0" if t < 2 else f"s{T4}"
        k.vmem(f"buffer_load_dwordx4 {vr(KR+12+4*t,4)}, v{V_QOFF}, {sr(RA,4)}, {so} offen offset:{(t&1)*2048}", "k")
    for t in range(4):
        so = "0" if t < 2 else f"s{T4}"
        k.vmem(f"buffer_load_dwordx4 {vr(VR+4*t,4)}, v{V_QOFF}, {sr(RB,4)}, {so} offen offset:{(t&1)*2048}", "v")
    k.stamp("i_kv")
    a(f"s_add_u32 s{C0+2}, s{S_WS}, {WS_FL}\ns_addc_u32 s{C0+3}, s{S_WS+1}, 0")
    a(f"s_load_dword s{S_TAG}, s[{C0+2}:{C0+3}], {FL_EPOCH}")
    a(f"s_lshl_b32 s{T1}, s{S_CH}, 1\ns_and_b32 s{T1}, s{T1}, 0xfffffffc")
    a(f"s_load_dword s{S_DV}, s[{S_D}:{S_D+1}], s{T1}")
    k.srd(RC, S_SK, 8192)
    for i in range(4):
        k.vmem(f"buffer_load_dwordx4 {vr(WR+4*i,4)}, v10, {sr(RC,4)}, 0 offen offset:{16*i}", "w")
    k.stamp("i_w")
    k.srd(RD, S_WS, 4 << 20)
    k.vmem(f"buffer_load_dword v237, v14, {sr(RD,4)}, 0 offen sc1", "xp")
    k.vmem(f"global_load_dwordx4 {vr(V_DUM,4)}, v{V_L16}, s[{C0}:{C0+1}]", "cp")
    k.srd(R_FL, C0+2, 32768)
    a(f"s_movk_i32 s{T2}, {FL_F1}")
    k.vmem(f"buffer_load_dword v237, v{V_FOFF}, {sr(R_FL,4)}, s{T2} offen sc1", "fp")
    a(f"s_movk_i32 s{T2}, {FL_F3}")
    k.vmem(f"buffer_load_dword v238, v{V_FOFF}, {sr(R_FL,4)}, s{T2} offen sc1", "fp")
    k.stamp("i_pre")
    XS, XP = 96, 104
    k.srd(RE, S_X, 4 << 20)
    a(f"s_sub_u32 s{S_P}, 2048, s{S_SIG}\ns_cmp_eq_u32 s{S_SIG}, 0\ns_cselect_b32 s{S_P}, 1024, s{S_P}")
    a("v_and_b32 v2, 15, v0\nv_lshrrev_b32 v3, 4, v0")
    a("v_lshlrev_b32 v4, 6, v2\nv_lshl_add_u32 v4, v3, 4, v4")
    a(f"s_lshl_b32 s{T0}, s{S_SIG}, 11\ns_lshl_b32 s{T1}, s{S_P}, 11")
    for Tt in range(2):
        k.vmem(f"buffer_load_dwordx4 {vr(XS+4*Tt,4)}, v4, {sr(RE,4)}, s{T0} offen offset:{1024*Tt}", "x")
    for Tt in range(2):
        k.vmem(f"buffer_load_dwordx4 {vr(XP+4*Tt,4)}, v4, {sr(RE,4)}, s{T1} offen offset:{1024*Tt}", "x")
    k.stamp("i_x")
    k.srd(R_TAB, S_TABP, TAB_BYTES)
    a(f"s_lshl_b32 s{T0}, s{S_W}, 10")
    for i in range(5):
        a(f"s_add_u32 m0, s{T0}, {R2_S1TAB + 4096*i}")
        a(f"s_add_u32 s{T1}, s{T0}, {4096*i}")
        k.vmem(f"buffer_load_dwordx4 v{V_L16}, {sr(R_TAB,4)}, s{T1} offen lds", "t1")
    k.stamp("i_t1")
    a("s_waitcnt lgkmcnt(0)")
    k.stamp("i_ep")
    a(f"s_add_u32 s{S_TAG}, s{S_TAG}, 1")
    lb = k.lab("Lnp")
    a(f"s_cmp_lg_u32 s{S_W}, 0\ns_cbranch_scc1 {lb}")
    a(f"s_lshl_b32 s{T0}, s{S_CB}, 7\ns_lshl_b32 s{T1}, s{S_RB}, 3\ns_add_u32 s{T0}, s{T0}, s{T1}\ns_add_u32 s{T0}, s{T0}, {FL_A}")
    a(f"v_mov_b32 v6, s{T0}\nv_mov_b32 v8, s{S_TAG}\nv_mov_b32 v9, s{S_XCC}")
    a("s_mov_b64 exec, 1")
    k.vmem(f"buffer_store_dwordx2 v[8:9], v6, {sr(R_FL,4)}, 0 offen sc1", "pub", optional=True)
    a("s_mov_b64 exec, -1")
    a(f"{lb}:")
    a(f"s_and_b32 s{T0}, s{S_CH}, 1\ns_lshl_b32 s{T1}, s{S_DV}, 16\ns_and_b32 s{S_DV}, s{S_DV}, 0xffff0000\ns_cmp_eq_u32 s{T0}, 0\ns_cselect_b32 s{S_DV}, s{T1}, s{S_DV}")
    k.stamp("issued")
    k.wait("w")
    k.stamp("kv")
    KF, WF, VF, KS, OUT = 112, 126, 134, 142, V_Q
    for m in range(4):
        for i in range(7):
            a(f"v_lshlrev_b32 v{KF+2*i}, 16, v{KR+4*i+m}")
            a(f"v_and_b32 v{KF+2*i+1}, 0xffff0000, v{KR+4*i+m}")
        for h in range(2):
            c = 2*m + h
            a(f"v_lshlrev_b32 v{WF+0+h}, 16, v{WR+2*c}")
            a(f"v_and_b32 v{WF+2+h}, 0xffff0000, v{WR+2*c}")
            a(f"v_lshlrev_b32 v{WF+4+h}, 16, v{WR+2*c+1}")
            a(f"v_and_b32 v{WF+6+h}, 0xffff0000, v{WR+2*c+1}")
        for t in range(4):
            a(f"v_lshlrev_b32 v{VF+2*t}, 16, v{VR+4*t+m}")
            a(f"v_and_b32 v{VF+2*t+1}, 0xffff0000, v{VR+4*t+m}")
        for t in range(4):
            a(f"v_pk_mul_f32 {vr(KS+2*t,2)}, {vr(WF+6,2)}, {vr(KF+2*t,2)}")
        for t in range(4):
            a(f"v_pk_fma_f32 {vr(KS+2*t,2)}, {vr(WF+4,2)}, {vr(KF+2*(t+1),2)}, {vr(KS+2*t,2)}")
        for t in range(4):
            a(f"v_pk_fma_f32 {vr(KS+2*t,2)}, {vr(WF+2,2)}, {vr(KF+2*(t+2),2)}, {vr(KS+2*t,2)}")
        for t in range(4):
            a(f"v_pk_fma_f32 {vr(KS+2*t,2)}, {vr(WF+0,2)}, {vr(KF+2*(t+3),2)}, {vr(KS+2*t,2)}")
        for t in range(4):
            a(f"v_pk_mul_f32 {vr(KS+2*t,2)}, {vr(KS+2*t,2)}, {vr(VF+2*t,2)}")
        for h in range(2):
            c = 2*m + h
            a(f"v_cvt_pk_bf16_f32 v{OUT+2*c}, v{KS+6+h}, v{KS+4+h}")
            a(f"v_cvt_pk_bf16_f32 v{OUT+2*c+1}, v{KS+2+h}, v{KS+0+h}")
    k.stamp("p1c")
    def xr_st(sc):
        L = []
        for c in range(8):
            L.append(f"s_mov_b32 s{T1}, {c*4096}")
            L.append(f"buffer_store_dwordx2 {vr(OUT+2*c,2)}, v13, {sr(RD,4)}, s{T1} offen{sc}")
        return L
    for t in xr_st(""):
        if t.startswith("buffer"): k.vmem(t, "xs")
        else: a(t)
    a(f"s_lshl_b32 s{T0}, s{S_CH}, 12")
    k.srd(RA, S_H, 4096, add=f"s{T0}")
    a(f"s_add_u32 m0, s{S_LB}, {H_N+64}")
    for it in range(4):
        k.vmem(f"buffer_load_dwordx4 v{V_L16}, {sr(RA,4)}, 0 offen offset:{it*1024} lds", "h")
    a(f"s_add_u32 m0, s{S_LB}, {H_S+64}")
    a(f"v_add_u32 v7, 4, v{V_L16}")
    for it in range(4):
        k.vmem(f"buffer_load_dwordx4 v7, {sr(RA,4)}, 0 offen offset:{it*1024} lds", "h")
    a("v_mov_b32 v7, 0")
    k.vmem(f"buffer_load_dword v227, v7, {sr(RA,4)}, 0 offen", "h")
    k.stamp("hissued")
    a(f"v_mov_b32 v9, {LDS_CNT}\nv_mov_b32 v10, 0\nds_write_b32 v9, v10")
    k.wait("t1", lgkm=0)
    a("s_barrier")
    k.stamp("s1bar")
    a(f"s_cmp_eq_u32 s{S_SIG}, 0")
    a(f"s_cselect_b32 s{C0}, 2.0, 1.0\ns_mov_b32 s{C0+1}, s{C0}")
    a(f"s_cselect_b32 s{C0+2}, 0, 1.0\ns_mov_b32 s{C0+3}, s{C0+2}")
    a(f"s_cselect_b32 s{C0+4}, 2.0, -1.0\ns_mov_b32 s{C0+5}, s{C0+4}")
    a(f"s_cselect_b32 s{T0}, 0, 1024")
    B1, TW, B2U, B2W = 16, 32, 64, 80
    a(f"v_add_u32 v5, {R2_S1TAB}, v{V_L16}")
    a(f"v_add_u32 v12, s{T0}, v5")
    for f in range(4):
        a(f"ds_read_b128 {vr(B1+4*f,4)}, v5 offset:{TOFF['S1B1']+1024*f}")
    a(f"s_mul_i32 s{T1}, s{S_W}, {S1_WAVE}\ns_add_u32 s{T1}, s{T1}, {R2}")
    a(f"v_mul_u32_u24 v6, {S1_P}, v2")
    a("v_lshl_add_u32 v6, v3, 4, v6")
    a(f"v_add_u32 v6, s{T1}, v6")
    a("v_bfe_u32 v7, v0, 2, 2\nv_lshl_add_u32 v7, v3, 2, v7")
    a(f"v_mul_u32_u24 v7, {S1_P}, v7")
    a("v_and_b32 v8, 3, v0\nv_lshl_add_u32 v7, v8, 3, v7")
    a(f"v_add_u32 v7, s{T1}, v7")
    U, W_, F = 112, 120, 128
    for Tt in range(2):
        for m in range(4):
            xs, xp = XS+4*Tt+m, XP+4*Tt+m
            a(f"v_lshlrev_b32 v{F}, 16, v{xs}\nv_and_b32 v{F+1}, 0xffff0000, v{xs}")
            a(f"v_lshlrev_b32 v{F+2}, 16, v{xp}\nv_and_b32 v{F+3}, 0xffff0000, v{xp}")
            a(f"v_pk_mul_f32 {vr(F+4,2)}, s[{C0}:{C0+1}], {vr(F,2)}")
            a(f"v_pk_mul_f32 {vr(F+6,2)}, s[{C0+2}:{C0+3}], {vr(F,2)}")
            a(f"v_pk_fma_f32 {vr(F+4,2)}, s[{C0+2}:{C0+3}], {vr(F+2,2)}, {vr(F+4,2)}")
            a(f"v_pk_fma_f32 {vr(F+6,2)}, s[{C0+4}:{C0+5}], {vr(F+2,2)}, {vr(F+6,2)}")
            a(f"v_cvt_pk_bf16_f32 v{U+4*Tt+m}, v{F+4}, v{F+5}")
            a(f"v_cvt_pk_bf16_f32 v{W_+4*Tt+m}, v{F+6}, v{F+7}")
        a(f"ds_write_b128 v6, {vr(U+4*Tt,4)} offset:{Tt*16*S1_P}")
        a(f"ds_write_b128 v6, {vr(W_+4*Tt,4)} offset:{S1_SEQ+Tt*16*S1_P}")
    for m in range(8):
        a(f"ds_read_b128 {vr(TW+4*m,4)}, v5 offset:{TOFF['S1TW']+1024*m}")
    a("s_waitcnt lgkmcnt(8)")
    AF = 136
    for X in range(2):
        for Td in range(2):
            for h in range(2):
                a(f"ds_read_b64_tr_b16 {vr(AF+8*X+4*Td+2*h,2)}, v7 offset:{X*S1_SEQ+h*16*S1_P+32*Td}")
    for T1_ in range(2):
        for kk in range(2):
            a(f"ds_read_b128 {vr(B2U+8*T1_+4*kk,4)}, v5 offset:{TOFF['S1B2']+3072*T1_+1024*kk}")
    a("s_waitcnt lgkmcnt(4)")
    k.stamp("s1tr")
    C1 = 152
    def c1(X, Td, Te, c): return C1 + (((X*2+Td)*2+Te)*2+c)*4
    first = True
    for X in range(2):
        for Td in range(2):
            for Te in range(2):
                for c in range(2):
                    a(f"v_mfma_f32_16x16x32_bf16 {vr(c1(X,Td,Te,c),4)}, {vr(AF+8*X+4*Td,4)}, {vr(B1+8*Te+4*c,4)}, 0")
    for T1_ in range(2):
        for kk in range(2):
            a(f"ds_read_b128 {vr(B2W+8*T1_+4*kk,4)}, v12 offset:{TOFF['S1B2']+3072*T1_+1024*kk}")
    ZA = 96
    def za(X, Te, c): return ZA + ((X*2+Te)*2+c)*4
    TT = 128
    for X in range(2):
        for Td in range(2):
            for Te in range(2):
                cr, ci = c1(X,Td,Te,0), c1(X,Td,Te,1)
                tc, ts = TW + ((Td*2+Te)*2)*4, TW + ((Td*2+Te)*2+1)*4
                for hh in range(2):
                    o = 2*hh
                    a(f"v_pk_mul_f32 {vr(TT+o,2)}, {vr(cr+o,2)}, {vr(tc+o,2)}")
                    a(f"v_pk_mul_f32 {vr(TT+4+o,2)}, {vr(ci+o,2)}, {vr(tc+o,2)}")
                    a(f"v_pk_fma_f32 {vr(TT+o,2)}, {vr(ci+o,2)}, {vr(ts+o,2)}, {vr(TT+o,2)}")
                    a(f"v_pk_fma_f32 {vr(TT+4+o,2)}, {vr(cr+o,2)}, {vr(ts+o,2)}, {vr(TT+4+o,2)} neg_lo:[1,0,0] neg_hi:[1,0,0]")
                for hh in range(2):
                    a(f"v_cvt_pk_bf16_f32 v{za(X,Te,0)+2*Td+hh}, v{TT+2*hh}, v{TT+2*hh+1}")
                    a(f"v_cvt_pk_bf16_f32 v{za(X,Te,1)+2*Td+hh}, v{TT+4+2*hh}, v{TT+4+2*hh+1}")
    k.stamp("s1tw")
    a(f"s_lshl_b32 s{T0}, s{S_CB}, 7\ns_add_u32 s{T0}, s{T0}, {FL_A}")
    a(f"v_and_b32 v9, 15, v0\nv_lshlrev_b32 v9, 3, v9")
    k.poll([f"buffer_load_dwordx2 v[14:15], v9, {sr(R_FL,4)}, s{T0} offen sc1"],
           [f"v_cmp_ne_u32 vcc, s{S_TAG}, v14"])
    a(f"v_cmp_ne_u32 vcc, s{S_XCC}, v15")
    a(f"s_or_b32 s{T0}, vcc_lo, vcc_hi")
    a(f"s_cmp_eq_u32 s{T0}, 0")
    a(f"s_cselect_b32 s{S_MODE}, 1, 0")
    if FORCE_GLOBAL: a(f"s_mov_b32 s{S_MODE}, 0")
    k.stamp("mode")
    a(f"s_lshl_b32 s{T0}, s{S_CB}, 8\ns_lshl_b32 s{T1}, s{S_RB}, 4\ns_add_u32 s{T0}, s{T0}, s{T1}\ns_lshl_b32 s{T1}, s{S_W}, 2\ns_add_u32 s{T0}, s{T0}, s{T1}")
    a(f"v_mov_b32 v9, s{T0}\nv_mov_b32 v10, s{S_TAG}\ns_movk_i32 s{T2}, {FL_F1}")
    def f1sig(sc):
        L = []
        if sc: L += xr_st(sc) + ["s_waitcnt vmcnt(0)"]
        return L + ["s_mov_b64 exec, 1", f"buffer_store_dword v10, v9, {sr(R_FL,4)}, s{T2} offen{sc}", "s_mov_b64 exec, -1"]
    k.dual(f1sig, "f1")
    a("s_waitcnt lgkmcnt(0)")
    C2 = 152
    def c2(X, T1_, Te): return C2 + ((X*2+T1_)*2+Te)*4
    for X in range(2):
        Bc = B2U if X == 0 else B2W
        for T1_ in range(2):
            for Te in range(2):
                a(f"v_mfma_f32_16x16x32_bf16 {vr(c2(X,T1_,Te),4)}, {vr(za(X,Te,0),4)}, {vr(Bc+8*T1_,4)}, 0")
                a(f"v_mfma_f32_16x16x32_bf16 {vr(c2(X,T1_,Te),4)}, {vr(za(X,Te,1),4)}, {vr(Bc+8*T1_+4,4)}, {vr(c2(X,T1_,Te),4)}")
    GO = 208
    V_GOFF = 224
    for T1_ in range(2):
        for Te in range(2):
            A_, B_ = c2(0,T1_,Te), c2(1,T1_,Te)
            for hh in range(2):
                o = 2*hh
                a(f"v_pk_fma_f32 {vr(TT+o,2)}, s[{C0+2}:{C0+3}], {vr(B_+o,2)}, {vr(A_+o,2)} neg_lo:[0,1,0] neg_hi:[0,1,0]")
                a(f"v_pk_fma_f32 {vr(TT+4+o,2)}, s[{C0+2}:{C0+3}], {vr(A_+o,2)}, {vr(B_+o,2)}")
            for hh in range(2):
                a(f"v_cvt_pk_bf16_f32 v{GO+8*T1_+2*Te+hh}, v{TT+2*hh}, v{TT+2*hh+1}")
                a(f"v_cvt_pk_bf16_f32 v{GO+8*T1_+4+2*Te+hh}, v{TT+4+2*hh}, v{TT+4+2*hh+1}")
    k.stamp("s1")
    GST = R2 + 45056
    a(f"v_and_b32 v8, 7, v2\nv_and_b32 v9, 1, v3")
    a(f"s_lshl_b32 s{T0}, s{S_W}, 1\ns_sub_u32 s{T1}, 6, s{T0}")
    a(f"v_or_b32 v10, s{T0}, v9\nv_xor_b32 v10, v10, v8\nv_or_b32 v11, s{T1}, v9\nv_xor_b32 v11, v11, v8")
    a(f"v_lshlrev_b32 v8, 1, v2\nv_lshrrev_b32 v9, 1, v3\nv_add_u32 v8, v8, v9\nv_lshlrev_b32 v8, 7, v8")
    a(f"v_lshl_add_u32 v10, v10, 4, v8\nv_lshl_add_u32 v11, v11, 4, v8")
    a(f"v_add_u32 v10, {GST}, v10\nv_add_u32 v11, {GST+8192}, v11")
    for T1_ in range(2):
        a(f"ds_write_b128 v10, {vr(GO+8*T1_,4)} offset:{4096*T1_}")
        a(f"ds_write_b128 v11, {vr(GO+8*T1_+4,4)} offset:{4096*T1_}")
    a(f"v_lshrrev_b32 v8, 3, v0\nv_and_b32 v9, 7, v0")
    a(f"v_lshrrev_b32 v10, 1, v8")
    a(f"v_xor_b32 v10, v10, v9")
    a(f"s_lshr_b32 s{T0}, s{S_W}, 1\ns_lshl_b32 s{T0}, s{T0}, 13\ns_and_b32 s{T1}, s{S_W}, 1\ns_lshl_b32 s{T1}, s{T1}, 12\ns_add_u32 s{T0}, s{T0}, s{T1}\ns_add_u32 s{T0}, s{T0}, {GST}")
    a(f"v_lshlrev_b32 v11, 7, v8\nv_add_u32 v11, s{T0}, v11")
    a(f"v_xor_b32 v12, 4, v10\nv_lshl_add_u32 v10, v10, 4, v11\nv_lshl_add_u32 v12, v12, 4, v11")
    a(f"s_lshl_b32 s{T0}, s2, 7\ns_sub_u32 s{T1}, {2045*32}, s{T0}\ns_cmp_ge_u32 s{S_W}, 2\ns_cselect_b32 s{T0}, s{T1}, s{T0}")
    a(f"s_and_b32 s{T1}, s{S_W}, 1\ns_lshl_b32 s{T1}, s{T1}, 21\ns_add_u32 s{T0}, s{T0}, s{T1}")
    a(f"v_lshlrev_b32 v{V_GOFF}, 16, v8\nv_lshl_add_u32 v{V_GOFF}, v9, 4, v{V_GOFF}\nv_add_u32 v{V_GOFF}, s{T0}, v{V_GOFF}")
    a(f"s_cmp_ge_u32 s{S_W}, 2\ns_cselect_b32 s{T0}, 0, 1\ns_or_b32 s{T0}, s{T0}, s2")
    a(f"s_cmp_eq_u32 s{T0}, 0\ns_cselect_b32 s{T0}, 6, 8")
    a(f"v_cmp_le_u32 vcc, s{T0}, v9")
    a(f"v_add_u32 v14, {(1024-2048)*32 & 0xffffffff}, v{V_GOFF}")
    a(f"v_cndmask_b32 v{V_GOFF}, v{V_GOFF}, v14, vcc")
    a("s_waitcnt lgkmcnt(0)")
    a("s_barrier")
    for i in range(4):
        a(f"ds_read_b128 {vr(GO+4*i,4)}, v{10 if (i&1)==0 else 12} offset:{1024*i}")
    a(f"s_lshl_b32 s{T0}, s{S_CH}, 12")
    k.srd(RB, S_WS, 4096, add=f"s{T0}")
    a(f"s_movk_i32 s{T2}, {FL_F1}")
    k.poll([f"buffer_load_dword v8, v{V_FOFF}, {sr(R_FL,4)}, s{T2} offen sc1"], [f"v_cmp_ne_u32 vcc, s{S_TAG}, v8"])
    k.stamp("f1")
    XA, XB = 16, 32
    for it in range(4):
        k.vmem(f"buffer_load_dwordx4 {vr(XA+4*it,4)}, v{V_L16}, {sr(RB,4)}, 0 offen offset:{it*1024} sc1", "xl")
        k.vmem(f"buffer_load_dword v{XB+it}, v{V_L16}, {sr(RB,4)}, 0 offen offset:{it*1024+16} sc1", "xl")
    k.srd(RC, S_WS, 4 << 20, add=WS_G)
    a("s_waitcnt lgkmcnt(0)")
    for i in range(4):
        a(f"s_mov_b32 s{T2}, {i*8*65536}")
        k.vmem(f"buffer_store_dwordx4 {vr(GO+4*i,4)}, v{V_GOFF}, {sr(RC,4)}, s{T2} offen sc1", "g")
    a("v_mov_b32 v40, 0\nv_mov_b32 v41, 0\nv_mov_b32 v42, 0\nv_mov_b32 v43, 0")
    a(f"v_and_b32 v8, 31, v0\nv_lshl_add_u32 v8, v8, 4, s{S_LB}")
    for m in range(2):
        a(f"ds_write_b128 v8, v[40:43] offset:{m*XSTR+4096}")
    a(f"v_and_b32 v8, 15, v0\nv_cmp_eq_u32 vcc, 15, v8\nv_lshl_add_u32 v8, v8, 2, s{S_LB}")
    a("v_cndmask_b32 v9, 0, v227, vcc")
    a(f"ds_write_b32 v8, v9 offset:{H_S}")
    a(f"ds_write_b32 v8, v40 offset:{H_N}")
    a(f"v_add_u32 v5, s{S_LB}, v{V_L16}")
    k.wait("xl")
    k.stamp("xl")
    for it in range(4):
        a(f"ds_write_b128 v5, {vr(XA+4*it,4)} offset:{XSTR+it*1024}")
        for i in range(4):
            hi = XA+4*it+i+1 if i < 3 else XB+it
            a(f"v_alignbit_b32 v{44+4*(it&1)+i}, v{hi}, v{XA+4*it+i}, 16")
        a(f"ds_write_b128 v5, {vr(44+4*(it&1),4)} offset:{it*1024}")
    a(f"v_and_b32 v6, 1, v0\nv_mul_u32_u24 v6, {XSTR}, v6")
    a("v_bfe_u32 v7, v0, 1, 3\nv_lshlrev_b32 v7, 6, v7\nv_sub_u32 v6, v6, v7")
    a("v_lshrrev_b32 v7, 4, v0\nv_lshl_add_u32 v6, v7, 4, v6")
    a(f"s_add_u32 s{T0}, s{S_LB}, {4032-3584}")
    a(f"v_add_u32 v6, s{T0}, v6")
    a(f"v_and_b32 v8, 15, v0\nv_and_b32 v9, 1, v0\nv_mul_u32_u24 v9, {H_N-H_S+4}, v9")
    a("v_lshl_add_u32 v8, v8, 2, v9\nv_lshl_add_u32 v8, v7, 4, v8")
    a(f"s_add_u32 s{T0}, s{S_LB}, {H_S}")
    a(f"v_add_u32 v8, s{T0}, v8")
    ACC = 16
    SET = [48, 112]
    def xf(s, u): return SET[s] + 4*u
    def hf(s, J): return SET[s] + 32 + 4*J
    def reads(s, jj):
        L = []
        for u in range(8):
            L.append(f"ds_read_b64 {vr(hf(s,u),2)}, v8 offset:{512*u+64*jj}")
            L.append(f"ds_read_b64 {vr(hf(s,u)+2,2)}, v8 offset:{512*u+64*jj+8}")
            L.append(f"ds_read_b128 {vr(xf(s,u),4)}, v6 offset:{512*(7-u)+64*jj}")
        return L
    def mfmas(s, first):
        L = []
        seen = set()
        for J in range(8):
            for u in range(8 - J):
                c = u + J
                cin = vr(ACC+4*c,4) if not (first and c not in seen) else "0"
                seen.add(c)
                L.append(f"v_mfma_f32_16x16x32_bf16 {vr(ACC+4*c,4)}, {vr(xf(s,u),4)}, {vr(hf(s,J),4)}, {cin}")
        return L
    a("s_waitcnt lgkmcnt(0)")
    for r in reads(0, 0): a(r)
    k.stamp("preloop")
    for jj in range(8):
        s = jj & 1
        a("s_waitcnt lgkmcnt(0)")
        k.stamp(f"jj{jj}")
        if jj == JJ_SIG:
            k.wait("g")
            k.stamp("gdone")
            lb = k.lab("Lf2")
            a(f"v_mov_b32 v9, {LDS_CNT}\nv_mov_b32 v10, 1")
            a("s_mov_b64 exec, 1")
            a("ds_add_rtn_u32 v10, v9, v10")
            a("s_waitcnt lgkmcnt(0)")
            a(f"v_readfirstlane_b32 s{T0}, v10")
            a(f"s_cmp_lg_u32 s{T0}, 3\ns_cbranch_scc1 {lb}")
            a(f"s_lshr_b32 s{T0}, s2, 4\ns_lshl_b32 s{T0}, s{T0}, 7\ns_and_b32 s{T1}, s2, 15\ns_lshl_b32 s{T1}, s{T1}, 2\ns_add_u32 s{T0}, s{T0}, s{T1}\ns_add_u32 s{T0}, s{T0}, {FL_F2}")
            a(f"v_mov_b32 v9, s{T0}\nv_mov_b32 v10, s{S_TAG}")
            k.vmem(f"buffer_store_dword v10, v9, {sr(R_FL,4)}, 0 offen sc1", "f2", optional=True)
            a(f"{lb}:")
            a("s_mov_b64 exec, -1")
        if jj == JJ_POLL:
            lb = k.lab("Lf2w")
            a(f"s_cmp_lg_u32 s{S_W}, 0\ns_cbranch_scc1 {lb}")
            a(f"v_lshrrev_b32 v9, 2, v0\nv_lshlrev_b32 v9, 7, v9\nv_and_b32 v10, 3, v0\nv_lshl_add_u32 v9, v10, 4, v9")
            a(f"s_movk_i32 s{T2}, {FL_F2}")
            k.poll([f"buffer_load_dwordx4 v[176:179], v9, {sr(R_FL,4)}, s{T2} offen sc1"],
                   [f"v_xor_b32 v{176+i}, s{S_TAG}, v{176+i}" for i in range(4)] +
                   ["v_or3_b32 v176, v176, v177, v178", "v_or_b32 v176, v176, v179", "v_cmp_ne_u32 vcc, 0, v176"], sleep=4)
            a(f"{lb}:")
            a("s_barrier")
            k.stamp("f2")
            a(f"s_lshl_b32 s{T0}, s{S_E}, 16\ns_add_u32 s{T0}, s{T0}, {WS_G}")
            k.srd(RB, S_WS, 65536, add=f"s{T0}")
            a(f"s_mul_i32 s{T0}, s{S_W}, {16*S2_PIECE}\ns_add_u32 s{T0}, s{T0}, {R2}\ns_lshl_b32 s{T1}, s{S_W}, 14")
        R = reads(1 - s, jj + 1) if jj < 7 else []
        M = mfmas(s, jj == 0)
        extra = []
        if jj == 0:
            extra.append([f"s_movk_i32 s{T4}, 0x1000"] + [f"s_mov_b32 s{RA}, s{S_Q}", f"s_mov_b32 s{RA+1}, s{S_Q+1}", f"s_mov_b32 s{RA+2}, {4<<20}", f"s_mov_b32 s{RA+3}, {SRD3}"])
            for t in range(4):
                so = "0" if t < 2 else f"s{T4}"
                extra.append([("q", f"buffer_load_dwordx4 {vr(V_Q+4*t,4)}, v{V_QOFF}, {sr(RA,4)}, {so} offen offset:{(t&1)*2048}")])
        if jj == 1:
            extra.append([f"s_lshl_b32 s{T0}, s{S_W}, 10", f"s_lshl_b32 s{T1}, s{S_R}, 12", f"s_add_u32 s{T1}, s{T1}, s{T0}"])
            for i, (off, rdep) in enumerate(((TOFF['S2A1'], True), (TOFF['S2TW'], True), (TOFF['S2B2'], False))):
                extra.append([f"s_add_u32 m0, s{T0}, {R3 + 4096*i}", f"s_add_u32 s{T2}, s{T1 if rdep else T0}, {off}",
                              ("t2", f"buffer_load_dwordx4 v{V_L16}, {sr(R_TAB,4)}, s{T2} offen lds")])
            extra.append([f"s_lshl_b32 s{T0}, s{S_CH}, 12", f"s_add_u32 s{T0}, s{T0}, {WS_ZT}",
                          f"s_add_u32 s{RE}, s{S_WS}, s{T0}", f"s_addc_u32 s{RE+1}, s{S_WS+1}, 0", f"s_mov_b32 s{RE+2}, 4096", f"s_mov_b32 s{RE+3}, {SRD3}",
                          "v_lshlrev_b32 v9, 6, v0", ("zp", f"buffer_load_dword v237, v9, {sr(RE,4)}, 0 offen sc1")])
        if jj == JJ_POLL:
            for i in range(16):
                extra.append([f"s_add_u32 m0, s{T0}, {i*S2_PIECE}", f"s_add_u32 s{T2}, s{T1}, {i*1024}",
                              ("gd", f"buffer_load_dwordx4 v{V_L16}, {sr(RB,4)}, s{T2} offen sc1 lds")])
        ri = 0; ei = 0
        for m in M:
            a(m)
            if ri < len(R): a(R[ri]); ri += 1
            elif ei < len(extra):
                pass
            if ei < len(extra) and ri >= 8:
                for t in extra[ei]:
                    if isinstance(t, tuple): k.vmem(t[1], t[0])
                    else: a(t)
                ei += 1
        assert ei == len(extra)
    k.stamp("loop")
    a("v_and_b32 v2, 15, v0\nv_lshrrev_b32 v3, 4, v0")
    a("v_lshlrev_b32 v4, 2, v2\nv_lshl_add_u32 v4, v3, 7, v4")
    a(f"s_add_u32 s{T0}, s{S_LB}, {XSTR+4092-64-3584}")
    a(f"v_sub_u32 v5, s{T0}, v4")
    KV = 48
    for c in range(8):
        a(f"ds_read_b32 v{KV+2*c}, v5 offset:{3584-512*c+64}")
        a(f"ds_read_b32 v{KV+2*c+1}, v5 offset:{3584-512*c}")
    a("s_waitcnt lgkmcnt(0)")
    TM = 64
    ZS = 80
    for c in range(8):
        R0, R1 = KV+2*c, KV+2*c+1
        t = TM + 4*(c & 1)
        a(f"v_and_b32 v{t}, 0xffff0000, v{R0}")
        a(f"v_lshlrev_b32 v{t+1}, 16, v{R0}")
        a(f"v_and_b32 v{t+2}, 0xffff0000, v{R1}")
        a(f"v_lshlrev_b32 v{t+3}, 16, v{R1}")
        for j in range(4):
            a(f"v_fmac_f32 v{ACC+4*c+j}, s{S_DV}, v{t+j}")
        a(f"v_cvt_pk_bf16_f32 v{ZS+2*c}, v{ACC+4*c}, v{ACC+4*c+1}")
        a(f"v_cvt_pk_bf16_f32 v{ZS+2*c+1}, v{ACC+4*c+2}, v{ACC+4*c+3}")
    def zt_st(sc):
        L = []
        for c in range(8):
            L.append(f"buffer_store_dword v{ZS+2*c}, v4, {sr(RE,4)}, 0 offen offset:{512*c}{sc}")
            L.append(f"buffer_store_dword v{ZS+2*c+1}, v4, {sr(RE,4)}, 0 offen offset:{512*c+64}{sc}")
        return L
    k.dual(zt_st, "zs")
    k.stamp("zst")
    k.wait("gd")
    a("s_barrier")
    A1, TW2, B2 = 16, 32, 96
    a(f"v_add_u32 v5, {R3}, v{V_L16}")
    for f in range(4):
        a(f"ds_read_b128 {vr(A1+4*f,4)}, v5 offset:{1024*f}")
    a("v_bfe_u32 v7, v0, 2, 2\nv_lshl_add_u32 v7, v3, 2, v7")
    a(f"v_mul_u32_u24 v7, {S2_PIECE}, v7")
    a("v_and_b32 v8, 3, v0\nv_lshl_add_u32 v7, v8, 3, v7")
    a(f"s_lshl_b32 s{T3}, s{S_W}, 8\ns_add_u32 s{T0}, s{T3}, {R2}")
    a(f"v_add_u32 v7, s{T0}, v7")
    ACC2 = 112; BF = 176
    def acc(i, c): return ACC2 + (i*2+c)*4
    def rd(i):
        b = BF + 8*(i & 3)
        for ks in range(2):
            for h in range(2):
                a(f"ds_read_b64_tr_b16 {vr(b+4*ks+2*h,2)}, v7 offset:{(32*ks+16*h)*S2_PIECE+i*32}")
    rd(0); rd(1); rd(2)
    a(f"s_lshl_b32 s{T0}, s{S_W}, 10\ns_add_u32 s{T0}, s{T0}, {R3+4096}")
    a(f"v_lshl_add_u32 v6, v3, 4, s{T0}")
    for i in range(8):
        if i < 5:
            rd(i+3); a("s_waitcnt lgkmcnt(12)")
        else:
            a(f"s_waitcnt lgkmcnt({4*(7-i)})")
        b = BF + 8*(i & 3)
        for c in range(2):
            a(f"v_mfma_f32_16x16x32_bf16 {vr(acc(i,c),4)}, {vr(A1+4*c,4)}, {vr(b,4)}, 0")
        for c in range(2):
            a(f"v_mfma_f32_16x16x32_bf16 {vr(acc(i,c),4)}, {vr(A1+8+4*c,4)}, {vr(b+4,4)}, {vr(acc(i,c),4)}")
    for m in range(16):
        a(f"ds_read_b128 {vr(TW2+4*m,4)}, v6 offset:{64*m}")
        if m == 11: a("s_waitcnt lgkmcnt(4)")
    TT2 = 208
    for i in range(8):
        if i == 0: pass
        if i == 4: a("s_waitcnt lgkmcnt(0)")
        cr, ci = acc(i,0), acc(i,1)
        tc, ts = TW2 + 8*i, TW2 + 8*i + 4
        for hh in range(2):
            o = 2*hh
            a(f"v_pk_mul_f32 {vr(TT2+o,2)}, {vr(cr+o,2)}, {vr(tc+o,2)}")
            a(f"v_pk_mul_f32 {vr(TT2+4+o,2)}, {vr(ci+o,2)}, {vr(tc+o,2)}")
            a(f"v_pk_fma_f32 {vr(TT2+o,2)}, {vr(ci+o,2)}, {vr(ts+o,2)}, {vr(TT2+o,2)}")
            a(f"v_pk_fma_f32 {vr(ci+o,2)}, {vr(cr+o,2)}, {vr(ts+o,2)}, {vr(TT2+4+o,2)} neg_lo:[1,0,0] neg_hi:[1,0,0]")
            a(f"v_mov_b32 v{cr+o}, v{TT2+o}\nv_mov_b32 v{cr+o+1}, v{TT2+o+1}")
    a("v_lshlrev_b32 v9, 13, v3\nv_lshl_add_u32 v9, v2, 4, v9")
    a(f"s_add_u32 s{T0}, s{T3}, {ZBUF}")
    a(f"v_add_u32 v9, s{T0}, v9")
    PK = 216
    for j in range(4):
        for c in range(2):
            p = PK + 4*((j*2+c) & 1)
            for ip in range(4):
                a(f"v_cvt_pk_bf16_f32 v{p+ip}, v{acc(2*ip,c)+j}, v{acc(2*ip+1,c)+j}")
            a(f"ds_write_b128 v9, {vr(p,4)} offset:{j*2048+c*1024}")
    for f in range(4):
        a(f"ds_read_b128 {vr(B2+4*f,4)}, v5 offset:{8192+1024*f}")
    k.wait("zs")
    a(f"s_lshl_b32 s{T0}, s{S_CB}, 8\ns_lshl_b32 s{T1}, s{S_RB}, 4\ns_add_u32 s{T0}, s{T0}, s{T1}\ns_lshl_b32 s{T1}, s{S_W}, 2\ns_add_u32 s{T0}, s{T0}, s{T1}")
    a(f"v_mov_b32 v10, s{T0}\nv_mov_b32 v11, s{S_TAG}\ns_movk_i32 s{T2}, {FL_F3}")
    k.dual(lambda sc: ["s_mov_b64 exec, 1", f"buffer_store_dword v11, v10, {sr(R_FL,4)}, s{T2} offen{sc}", "s_mov_b64 exec, -1"], "f3")
    a("s_waitcnt lgkmcnt(0)")
    a("s_barrier")
    k.stamp("s2b")
    a(f"s_lshl_b32 s{T0}, s{S_W}, 13\ns_add_u32 s{T0}, s{T0}, {ZBUF}")
    a(f"v_add_u32 v10, s{T0}, v{V_L16}")
    ZF = 16
    for jj in range(4):
        for c in range(2):
            a(f"ds_read_b128 {vr(ZF+(jj*2+c)*4,4)}, v10 offset:{jj*2048+c*1024}")
    a("v_lshlrev_b32 v11, 18, v2\nv_lshl_add_u32 v11, v3, 3, v11")
    a(f"s_lshl_b32 s{T0}, s{S_R}, 4\ns_lshl_b32 s{T1}, s{S_W}, 2\ns_add_u32 s{T0}, s{T0}, s{T1}\ns_lshl_b32 s{T0}, s{T0}, 12")
    a(f"s_lshl_b32 s{T1}, s{S_E}, 5\ns_add_u32 s{T0}, s{T0}, s{T1}\ns_add_u32 s{T3}, s{T0}, 2048")
    k.srd(RC, S_OUT, 8 << 20)
    k.srd(RB, S_WS, 4 << 20, add=WS_ZT)
    C2b = 48
    for jj in range(4):
        a(f"s_waitcnt lgkmcnt({6-2*jj})")
        for T1_ in range(2):
            d = C2b + (jj*2+T1_)*4
            a(f"v_mfma_f32_16x16x32_bf16 {vr(d,4)}, {vr(ZF+(jj*2)*4,4)}, {vr(B2+8*T1_,4)}, 0")
            a(f"v_mfma_f32_16x16x32_bf16 {vr(d,4)}, {vr(ZF+(jj*2+1)*4,4)}, {vr(B2+8*T1_+4,4)}, {vr(d,4)}")
    a(f"s_movk_i32 s{T2}, {FL_F3}")
    k.poll([f"buffer_load_dword v8, v{V_FOFF}, {sr(R_FL,4)}, s{T2} offen sc1"], [f"v_cmp_ne_u32 vcc, s{S_TAG}, v8"])
    ZR = 112
    for c in range(8):
        a(f"s_mov_b32 s{T1}, {c*4096}")
        k.vmem(f"buffer_load_dwordx2 {vr(ZR+2*c,2)}, v{V_ZOFF}, {sr(RB,4)}, s{T1} offen sc1", "zl")
    O = 80
    for jj in range(4):
        for T1_ in range(2):
            d = C2b + (jj*2+T1_)*4; o = O + 2*(jj*2+T1_)
            a(f"v_cvt_pk_bf16_f32 v{o}, v{d}, v{d+1}")
            a(f"v_cvt_pk_bf16_f32 v{o+1}, v{d+2}, v{d+3}")
    k.stamp("o2")
    k.wait("zl")
    ZF3, QF, OUT3 = 128, 132, 136
    for t in range(4):
        for m in range(4):
            for h in range(2):
                c = 2*m + h
                src = ZR + 2*c + (t >> 1)
                if t & 1: a(f"v_and_b32 v{ZF3+h}, 0xffff0000, v{src}")
                else:     a(f"v_lshlrev_b32 v{ZF3+h}, 16, v{src}")
            a(f"v_lshlrev_b32 v{QF}, 16, v{V_Q+4*t+m}")
            a(f"v_and_b32 v{QF+1}, 0xffff0000, v{V_Q+4*t+m}")
            a(f"v_pk_mul_f32 {vr(QF,2)}, {vr(QF,2)}, {vr(ZF3,2)}")
            a(f"v_cvt_pk_bf16_f32 v{OUT3+4*t+m}, v{QF}, v{QF+1}")
        a(f"s_mov_b32 s{T1}, {t*4096}")
        k.vmem(f"buffer_store_dwordx4 {vr(OUT3+4*t,4)}, v{V_OOFF}, {sr(RC,4)}, s{T1} offen", "o3")
    for jj in range(4):
        for T1_ in range(2):
            o = O + 2*(jj*2+T1_)
            a(f"s_add_u32 s{T1}, s{T3}, {jj*4096 + T1_*(16*64*4096)}")
            k.vmem(f"buffer_store_dwordx2 {vr(o,2)}, v11, {sr(RC,4)}, s{T1} offen", "o2")
    lb = k.lab("Lne")
    a(f"s_or_b32 s{T0}, s2, s{S_W}\ns_cmp_lg_u32 s{T0}, 0\ns_cbranch_scc1 {lb}")
    a(f"v_mov_b32 v8, {FL_EPOCH}\nv_mov_b32 v9, s{S_TAG}")
    a("s_mov_b64 exec, 1")
    a(f"buffer_store_dword v9, v8, {sr(R_FL,4)}, 0 offen")
    a("s_mov_b64 exec, -1")
    a(f"{lb}:")
    if PROF:
        k.stamp("fin0")
        a("s_waitcnt vmcnt(0)")
        k.stamp("fin")
        a(f"s_memrealtime s[76:77]")
        a("s_waitcnt lgkmcnt(0)")
        a(f"s_add_u32 s{C0}, s{S_WS}, {64<<20}\ns_addc_u32 s{C0+1}, s{S_WS+1}, 0")
        a(f"s_lshl_b32 s{T0}, s{S_SIG}, 6\nv_mov_b32 v0, s{T0}")
        a("s_mov_b64 exec, 1")
        for i in range(k.nstamp):
            a(f"s_sub_u32 s{T1}, s{ST0+2*i}, s{ST0}\nv_mov_b32 v4, s{T1}\nglobal_store_dword v0, v4, s[{C0}:{C0+1}] offset:{4*i}\ns_nop 1")
        a(f"v_mov_b32 v4, s78\nglobal_store_dword v0, v4, s[{C0}:{C0+1}] offset:48\ns_nop 1")
        a(f"v_mov_b32 v4, s76\nglobal_store_dword v0, v4, s[{C0}:{C0+1}] offset:52\ns_nop 1")
        a(f"v_mov_b32 v4, {k.nstamp}\nglobal_store_dword v0, v4, s[{C0}:{C0+1}] offset:56\ns_nop 1")
        a(f"v_mov_b32 v4, s{S_MODE}\nglobal_store_dword v0, v4, s[{C0}:{C0+1}] offset:60")
    a("s_endpgm")
    if PROF: print("stamps:", k.names)
    lines = k.a.lines + k.tail.lines + ["L_end:", "s_endpgm"]
    return lines

def main(out_path):
    lines = fix_hazards(build())
    hdr = open(os.path.join(os.path.dirname(__file__), "header.txt")).read().rstrip("\n").split("\n")
    L = list(hdr)
    L.append(f"; @launch grid=(256,1,1) block=(256,1,1) lds={LDS_BYTES}")
    L += ['.amdgcn_target "amdgcn-amd-amdhsa--gfx950"', ".text", f".globl {KNAME}", ".p2align 8", f".type {KNAME},@function", f"{KNAME}:"]
    L += lines
    L += ["L_code_end:", ".p2align 8", ".type L_tables,@object", "L_tables:"] + TAB_LINES + [".size L_tables, .-L_tables"]
    L += ['.section .rodata,"a"', ".p2align 6", f".amdhsa_kernel {KNAME}", "  .amdhsa_next_free_vgpr 256", "  .amdhsa_next_free_sgpr 102",
          "  .amdhsa_accum_offset 256", "  .amdhsa_group_segment_fixed_size 0", "  .amdhsa_kernarg_size 112",
          "  .amdhsa_user_sgpr_count 2", "  .amdhsa_user_sgpr_kernarg_segment_ptr 1", "  .amdhsa_system_sgpr_workgroup_id_x 1",
          "  .amdhsa_float_denorm_mode_32 3", ".end_amdhsa_kernel"]
    open(out_path, "w").write("\n".join(L) + "\n")

if __name__ == "__main__":
    main(sys.argv[1] if len(sys.argv) > 1 else f"cdna_kernels/{NAME}.s")
```

```python
import sys, os
sys.path.insert(0, os.path.dirname(__file__))
from asmlib import *
import tables

NAME = "concat_heads__ssm_conv_h3__spectral_fnet__prompt"
KNAME = NAME + "_kernel"
WS_XR, WS_ZT, WS_G, WS_FL = 0, 0, 8 << 20, 12 << 20
FL_EPOCH, FL_A, FL_F1, FL_F3, FL_F2 = 0, 4096, 8192, 12288, 16384
SRD3 = "0x20000"
E = os.environ.get
PROF = E("PROF") == "1"
NT = " nt" if E("NT", "1") == "1" else ""
NTP = " nt" if E("NTP", "1") == "1" else ""
STAMPS = set(E("STAMPS", "entry,s1go,s1,kv,p1c,f1,preloop,loop,s2go,o2,fin").split(","))
FORCE_GLOBAL = E("FORCE_GLOBAL") == "1"
JJ_SIG = int(E("JJ_SIG", 2)); JJ_F2LD = int(E("JJ_F2LD", 6)); JJ_F2 = int(E("JJ_F2", 7))
O3SC = E("O3SC", " sc1"); O2SC = E("O2SC", ""); WBL2 = int(E("WBL2", 0))

T = tables.build(four=True)
TAB_ORDER = ['S1B1', 'S1TW', 'S1B2', 'S2A1', 'S2TW', 'S2B2']
TAB_LINES, TOFF, TAB_BYTES = tables.emit_tables(T, TAB_ORDER)

XSTR = 4640
H_S = 2 * XSTR
H_N = H_S + 4224
CH_LDS = H_N + 4160
R2 = 4 * CH_LDS
S1_P = 96; S1_SEQ = 32 * S1_P; S1_WAVE = 2 * S1_SEQ
R2_S1TAB = R2 + 4 * S1_WAVE
GST = R2 + 45056
S2_PIECE = 1056
R3 = R2 + 64 * S2_PIECE
LDS_CNT = R3 + 12288
LDS_BYTES = LDS_CNT + 64
ZBUF = 0

S_Q, S_K, S_V, S_SK, S_H, S_D, S_X = 4, 6, 8, 10, 12, 14, 16
S_TABP = 18
S_OUT, S_WS = 20, 22
S_CB, S_RB, S_W, S_TAG, S_MODE, S_CH = 24, 25, 26, 27, 28, 29
S_XCC, S_SIG, S_P, S_LB, S_DV, S_E, S_R = 30, 31, 32, 33, 34, 35, 3
RA, RB, RC, RD, RE, R_FL, R_TAB = 36, 40, 44, 48, 52, 56, 60
T0, T1, T2, T3, T4, S_GD = 64, 65, 66, 67, 68, 69
C0 = 70
S_ZO = 75
S_DBG = 76
S_LAST = 74
ST0 = 80
V_Q = 240
V_ZOFF, V_OOFF, V_QOFF, V_FOFF, V_L16 = 232, 233, 234, 235, 236
V_DUM = 228
V_GOFF, V_XRO, V_XPO, V_H01 = 224, 225, 226, 227

class K:
    def __init__(self):
        self.a = Asm(); self.tail = Asm()
        self.vm = []; self.nlab = 0; self.nstamp = 0; self.names = []
    def lab(self, p="L"):
        self.nlab += 1; return f"{p}_{self.nlab}"
    def vmem(self, text, tag, optional=False):
        self.a(text); self.vm.append((tag, optional))
    def count_after(self, tag):
        idx = max(i for i, (t, o) in enumerate(self.vm) if t == tag)
        n = sum(1 for (t, o) in self.vm[idx+1:] if not o)
        assert n <= 63, n
        return n
    def wait(self, tag, lgkm=None):
        self.a(f"s_waitcnt vmcnt({self.count_after(tag)})" + (f" lgkmcnt({lgkm})" if lgkm is not None else ""))
    def srd_lines(self, d, base, nbytes, add=None):
        if add is None: L = [f"s_mov_b32 s{d}, s{base}", f"s_mov_b32 s{d+1}, s{base+1}"]
        else: L = [f"s_add_u32 s{d}, s{base}, {add}", f"s_addc_u32 s{d+1}, s{base+1}, 0"]
        return L + [f"s_mov_b32 s{d+2}, {nbytes}", f"s_mov_b32 s{d+3}, {SRD3}"]
    def srd(self, d, base, nbytes, add=None):
        for t in self.srd_lines(d, base, nbytes, add): self.a(t)
    def stamp(self, name=""):
        if PROF and name in STAMPS:
            self.names.append(name)
            assert self.nstamp < 11
            self.a(f"s_memtime s[{ST0+2*self.nstamp}:{ST0+2*self.nstamp+1}]")
            self.nstamp += 1
    def dual(self, fn, tag):
        lg, lj = self.lab("Lg"), self.lab("Lj")
        a = self.a
        a(f"s_cmp_eq_u32 s{S_MODE}, 0")
        a(f"s_cbranch_scc1 {lg}")
        for t in fn(""):
            if t.startswith(("buffer_", "global_")): self.vmem(t, tag)
            else: a(t)
        a(f"{lj}:")
        self.tail(f"{lg}:")
        for t in fn(" sc1"): self.tail(t)
        self.tail(f"s_branch {lj}")
    def poll_lines(self, loads, cmps, sleep=1):
        lp, ok = self.lab("Lp"), self.lab("Lok")
        L = [f"s_mov_b32 s{T4}, 0x100000", f"{lp}:"] + loads + ["s_waitcnt vmcnt(0)"] + cmps
        L += [f"s_cbranch_vccz {ok}", f"s_sleep {sleep}", f"s_sub_u32 s{T4}, s{T4}, 1", f"s_cmp_lg_u32 s{T4}, 0", f"s_cbranch_scc1 {lp}", f"{ok}:"]
        return L
    def poll(self, loads, cmps, sleep=1):
        for t in self.poll_lines(loads, cmps, sleep): self.a(t)
    def check_or_poll(self, tag, loads, cmps, sleep=1):
        lg, lj = self.lab("Lr"), self.lab("Lrj")
        self.wait(tag)
        for t in cmps: self.a(t)
        self.a(f"s_cbranch_vccnz {lg}")
        self.a(f"{lj}:")
        self.tail(f"{lg}:")
        for t in self.poll_lines(loads, cmps, sleep): self.tail(t)
        self.tail(f"s_branch {lj}")

def build():
    k = K(); a = k.a
    KR, VR, WR = 16, 44, 60
    XS, XP = 76, 84
    OUT = V_Q
    a("s_cmp_ge_u32 s2, 256")
    a("s_cbranch_scc1 L_end")
    if PROF: a(f"s_memrealtime s[78:79]")
    k.stamp("entry")
    a("s_load_dwordx16 s[4:19], s[0:1], 0")
    a("s_load_dwordx2 s[20:21], s[0:1], 88")
    a("s_load_dwordx2 s[22:23], s[0:1], 104")
    a("v_lshrrev_b32 v1, 6, v0\nv_and_b32 v0, 63, v0")
    a(f"s_getpc_b64 s[{C0}:{C0+1}]")
    a("L_pc0:")
    a(f"v_readfirstlane_b32 s{S_W}, v1")
    a(f"v_lshlrev_b32 v{V_L16}, 4, v0")
    a(f"s_lshr_b32 s{T1}, s2, 3\ns_lshl_b32 s{T1}, s{T1}, 2\ns_add_u32 s{T1}, s{T1}, s{S_W}\ns_and_b32 s{T1}, s{T1}, 31\ns_lshl_b32 s{T1}, s{T1}, 10")
    a(f"s_min_u32 s{T1}, s{T1}, L_code_end-L_pc0-1024")
    a(f"s_add_u32 s{C0}, s{C0}, s{T1}\ns_addc_u32 s{C0+1}, s{C0+1}, 0")
    k.vmem(f"global_load_dwordx4 {vr(V_DUM,4)}, v{V_L16}, s[{C0}:{C0+1}]", "cp")
    a(f"s_getpc_b64 s[{C0+4}:{C0+5}]")
    a(f"s_add_u32 s{C0+4}, s{C0+4}, L_tables-.\ns_addc_u32 s{C0+5}, s{C0+5}, 0")
    k.srd(R_TAB, C0+4, TAB_BYTES)
    a(f"s_getreg_b32 s{S_XCC}, hwreg(HW_REG_XCC_ID, 0, 4)")
    a(f"s_and_b32 s{S_CB}, s2, 7\ns_lshr_b32 s{S_RB}, s2, 3\ns_lshr_b32 s{T0}, s{S_RB}, 4")
    a(f"s_lshl_b32 s{S_E}, s{S_CB}, 3\ns_lshr_b32 s{T1}, s{S_RB}, 2\ns_add_u32 s{S_E}, s{S_E}, s{T1}\ns_and_b32 s{S_R}, s{S_RB}, 3")
    a(f"s_lshl_b32 s{S_CB}, s{S_CB}, 1\ns_add_u32 s{S_CB}, s{S_CB}, s{T0}\ns_and_b32 s{S_RB}, s{S_RB}, 15")
    a(f"s_lshl_b32 s{S_SIG}, s2, 2\ns_add_u32 s{S_SIG}, s{S_SIG}, s{S_W}")
    a(f"s_sub_u32 s{S_P}, 2048, s{S_SIG}\ns_cmp_eq_u32 s{S_SIG}, 0\ns_cselect_b32 s{S_P}, 1024, s{S_P}")
    a("v_and_b32 v2, 7, v0\nv_lshrrev_b32 v3, 3, v0")
    a(f"s_lshl_b32 s{T0}, s{S_RB}, 7\ns_lshl_b32 s{T1}, s{S_W}, 5\ns_add_u32 s{T0}, s{T0}, s{T1}")
    a(f"v_lshl_add_u32 v4, v3, 2, s{T0}")
    a(f"s_lshl_b32 s{T1}, s{S_CB}, 7")
    a(f"v_lshl_add_u32 v5, v2, 4, s{T1}")
    a(f"v_lshl_add_u32 v{V_QOFF}, v4, 11, v5")
    a(f"v_add_u32 v7, 0xffffe800, v{V_QOFF}\nv_add_u32 v8, 0xfffff000, v{V_QOFF}\nv_add_u32 v9, 0xfffff800, v{V_QOFF}")
    a(f"s_lshl_b32 s{T1}, s{S_CB}, 9")
    a(f"v_lshl_add_u32 v10, v2, 6, s{T1}")
    a(f"s_lshl_b32 s{T1}, s{S_CB}, 18")
    a(f"v_lshl_add_u32 v11, v2, 15, s{T1}")
    a("v_lshlrev_b32 v12, 1, v4")
    a(f"v_add_u32 v{V_ZOFF}, v11, v12")
    a(f"v_sub_u32 v{V_XRO}, v11, v12\nv_add_u32 v{V_XRO}, 4088, v{V_XRO}")
    a(f"v_lshl_add_u32 v{V_OOFF}, v4, 12, v5")
    a("v_and_b32 v2, 15, v0\nv_lshrrev_b32 v3, 4, v0")
    a("v_lshlrev_b32 v4, 6, v2\nv_lshl_add_u32 v4, v3, 4, v4")
    a("s_waitcnt lgkmcnt(0)")
    k.stamp("karg")
    k.srd(RA, S_K, 4 << 20); k.srd(RB, S_V, 4 << 20)
    a(f"s_movk_i32 s{T4}, 0x1000")
    for i, vo in enumerate((7, 8, 9)):
        k.vmem(f"buffer_load_dwordx4 {vr(KR+4*i,4)}, v{vo}, {sr(RA,4)}, 0 offen{NT}", "k")
    for t in range(4):
        so = "0" if t < 2 else f"s{T4}"
        k.vmem(f"buffer_load_dwordx4 {vr(KR+12+4*t,4)}, v{V_QOFF}, {sr(RA,4)}, {so} offen offset:{(t&1)*2048}{NT}", "k")
    for t in range(4):
        so = "0" if t < 2 else f"s{T4}"
        k.vmem(f"buffer_load_dwordx4 {vr(VR+4*t,4)}, v{V_QOFF}, {sr(RB,4)}, {so} offen offset:{(t&1)*2048}{NT}", "v")
    k.srd(RC, S_SK, 8192)
    for i in range(4):
        k.vmem(f"buffer_load_dwordx4 {vr(WR+4*i,4)}, v10, {sr(RC,4)}, 0 offen offset:{16*i}", "w")
    k.stamp("i_w")
    a(f"s_lshl_b32 s{S_CH}, s{S_CB}, 6\ns_lshl_b32 s{T1}, s{S_RB}, 2\ns_add_u32 s{S_CH}, s{S_CH}, s{T1}\ns_add_u32 s{S_CH}, s{S_CH}, s{S_W}")
    a(f"s_add_u32 s{C0+2}, s{S_WS}, {WS_FL}\ns_addc_u32 s{C0+3}, s{S_WS+1}, 0")
    a(f"s_load_dword s{S_TAG}, s[{C0+2}:{C0+3}], {FL_EPOCH}")
    a(f"s_lshl_b32 s{T1}, s{S_CH}, 1\ns_and_b32 s{T1}, s{T1}, 0xfffffffc")
    a(f"s_load_dword s{S_DV}, s[{S_D}:{S_D+1}], s{T1}")
    k.srd(RE, S_X, 4 << 20)
    a(f"s_lshl_b32 s{T2}, s{S_SIG}, 11\ns_lshl_b32 s{T3}, s{S_P}, 11")
    for Tt in range(2):
        k.vmem(f"buffer_load_dwordx4 {vr(XS+4*Tt,4)}, v4, {sr(RE,4)}, s{T2} offen offset:{1024*Tt}{NT}", "x")
    for Tt in range(2):
        k.vmem(f"buffer_load_dwordx4 {vr(XP+4*Tt,4)}, v4, {sr(RE,4)}, s{T3} offen offset:{1024*Tt}{NT}", "x")
    k.stamp("i_x")
    k.srd(R_FL, C0+2, 32768)
    a(f"s_lshl_b32 s{T1}, s{S_CB}, 8")
    a(f"v_lshl_add_u32 v{V_FOFF}, v0, 2, s{T1}")
    a(f"s_movk_i32 s{T2}, {FL_F1}")
    k.vmem(f"buffer_load_dword v237, v{V_FOFF}, {sr(R_FL,4)}, s{T2} offen sc1", "fp")
    a(f"s_movk_i32 s{T2}, {FL_F3}")
    k.vmem(f"buffer_load_dword v238, v{V_FOFF}, {sr(R_FL,4)}, s{T2} offen sc1", "fp")
    a(f"s_mul_i32 s{S_LB}, s{S_W}, {CH_LDS}")
    k.srd(RD, S_WS, 4 << 20)
    a(f"s_lshl_b32 s{T1}, s{S_CB}, 18\ns_lshl_b32 s{T2}, s{S_RB}, 8\ns_sub_u32 s{T1}, s{T1}, s{T2}")
    a(f"s_and_b32 s{T2}, s{S_W}, 1\ns_lshl_b32 s{T2}, s{T2}, 7\ns_add_u32 s{T1}, s{T1}, s{T2}\ns_add_u32 s{T1}, s{T1}, 3840")
    a(f"s_lshr_b32 s{T2}, s{S_W}, 1\ns_lshl_b32 s{T2}, s{T2}, 17\ns_add_u32 s{T1}, s{T1}, s{T2}")
    a(f"v_lshl_add_u32 v{V_XPO}, v0, 12, s{T1}")
    a(f"v_cmp_gt_u32 vcc, 32, v0\nv_mov_b32 v9, 0x7ffffff0")
    a(f"v_cndmask_b32 v{V_XPO}, v9, v{V_XPO}, vcc")
    a(f"v_mov_b32 v9, {LDS_CNT}\nv_mov_b32 v10, 0\nds_write_b32 v9, v10")
    a("s_waitcnt lgkmcnt(0)")
    a(f"s_add_u32 s{S_TAG}, s{S_TAG}, 1")
    lb = k.lab("Lnp")
    a(f"s_cmp_lg_u32 s{S_W}, 0\ns_cbranch_scc1 {lb}")
    a(f"s_lshl_b32 s{T0}, s{S_CB}, 7\ns_lshl_b32 s{T1}, s{S_RB}, 3\ns_add_u32 s{T0}, s{T0}, s{T1}\ns_add_u32 s{T0}, s{T0}, {FL_A}")
    a(f"v_mov_b32 v13, s{T0}\nv_mov_b32 v14, s{S_TAG}\nv_mov_b32 v15, s{S_XCC}")
    a("s_mov_b64 exec, 1")
    k.vmem(f"buffer_store_dwordx2 v[14:15], v13, {sr(R_FL,4)}, 0 offen sc1", "pub", optional=True)
    a("s_mov_b64 exec, -1")
    a(f"{lb}:")
    a(f"s_and_b32 s{T0}, s{S_CH}, 1\ns_lshl_b32 s{T1}, s{S_DV}, 16\ns_and_b32 s{S_DV}, s{S_DV}, 0xffff0000\ns_cmp_eq_u32 s{T0}, 0\ns_cselect_b32 s{S_DV}, s{T1}, s{S_DV}")
    a(f"v_add_u32 v5, {R2_S1TAB}, v{V_L16}")
    a(f"s_cmp_eq_u32 s{S_SIG}, 0\ns_cselect_b32 s{T0}, 2, 1\ns_lshl_b32 s{T0}, s{T0}, 10")
    a(f"v_add_u32 v12, s{T0}, v5")
    a(f"s_mul_i32 s{T1}, s{S_W}, {S1_WAVE}\ns_add_u32 s{T1}, s{T1}, {R2}")
    a(f"v_mul_u32_u24 v6, {S1_P}, v2\nv_lshl_add_u32 v6, v3, 4, v6\nv_add_u32 v6, s{T1}, v6")
    a(f"v_bfe_u32 v7, v0, 2, 2\nv_lshl_add_u32 v7, v3, 2, v7\nv_mul_u32_u24 v7, {S1_P}, v7")
    a(f"v_and_b32 v8, 3, v0\nv_lshl_add_u32 v7, v8, 3, v7\nv_add_u32 v7, s{T1}, v7")
    k.stamp("issued")
    k.wait("w")
    k.stamp("kv")
    a(f"s_lshl_b32 s{T0}, s{S_W}, 10")
    for i in range(5):
        a(f"s_add_u32 m0, s{T0}, {R2_S1TAB + 4096*i}")
        a(f"s_add_u32 s{T1}, s{T0}, {4096*i}")
        k.vmem(f"buffer_load_dwordx4 v{V_L16}, {sr(R_TAB,4)}, s{T1} offen lds", "t1")
    KF, WF, VF, KS = 112, 126, 134, 142
    for m in range(4):
        for i in range(7):
            a(f"v_lshlrev_b32 v{KF+2*i}, 16, v{KR+4*i+m}")
            a(f"v_and_b32 v{KF+2*i+1}, 0xffff0000, v{KR+4*i+m}")
        for h in range(2):
            c = 2*m + h
            a(f"v_lshlrev_b32 v{WF+0+h}, 16, v{WR+2*c}")
            a(f"v_and_b32 v{WF+2+h}, 0xffff0000, v{WR+2*c}")
            a(f"v_lshlrev_b32 v{WF+4+h}, 16, v{WR+2*c+1}")
            a(f"v_and_b32 v{WF+6+h}, 0xffff0000, v{WR+2*c+1}")
        for t in range(4):
            a(f"v_lshlrev_b32 v{VF+2*t}, 16, v{VR+4*t+m}")
            a(f"v_and_b32 v{VF+2*t+1}, 0xffff0000, v{VR+4*t+m}")
        for t in range(4):
            a(f"v_pk_mul_f32 {vr(KS+2*t,2)}, {vr(WF+6,2)}, {vr(KF+2*t,2)}")
        for t in range(4):
            a(f"v_pk_fma_f32 {vr(KS+2*t,2)}, {vr(WF+4,2)}, {vr(KF+2*(t+1),2)}, {vr(KS+2*t,2)}")
        for t in range(4):
            a(f"v_pk_fma_f32 {vr(KS+2*t,2)}, {vr(WF+2,2)}, {vr(KF+2*(t+2),2)}, {vr(KS+2*t,2)}")
        for t in range(4):
            a(f"v_pk_fma_f32 {vr(KS+2*t,2)}, {vr(WF+0,2)}, {vr(KF+2*(t+3),2)}, {vr(KS+2*t,2)}")
        for t in range(4):
            a(f"v_pk_mul_f32 {vr(KS+2*t,2)}, {vr(KS+2*t,2)}, {vr(VF+2*t,2)}")
        for h in range(2):
            c = 2*m + h
            a(f"v_cvt_pk_bf16_f32 v{OUT+2*c}, v{KS+6+h}, v{KS+4+h}")
            a(f"v_cvt_pk_bf16_f32 v{OUT+2*c+1}, v{KS+2+h}, v{KS+0+h}")
    k.stamp("p1c")
    def xr_st(sc):
        L = []
        for c in range(8):
            L.append(f"s_mov_b32 s{T1}, {c*4096}")
            L.append(f"buffer_store_dwordx2 {vr(OUT+2*c,2)}, v{V_XRO}, {sr(RD,4)}, s{T1} offen{sc}")
        return L
    for t in xr_st(""):
        if t.startswith("buffer"): k.vmem(t, "xs")
        else: a(t)
    k.stamp("i_xs")
    k.wait("t1")
    a("s_barrier")
    k.stamp("s1go")
    a(f"s_lshl_b32 s{C0}, s{S_CB}, 7\ns_add_u32 s{C0}, s{C0}, {FL_A}")
    a(f"v_and_b32 v13, 15, v0\nv_lshlrev_b32 v13, 3, v13")
    pa_load = f"buffer_load_dwordx2 v[14:15], v13, {sr(R_FL,4)}, s{C0} offen sc1"
    k.vmem(pa_load, "pa")
    k.vmem(f"buffer_load_dword v237, v{V_XPO}, {sr(RD,4)}, 0 offen sc1{NTP}", "xp")
    k.stamp("i_hn")
    B1, AF, TW, TT, GO = 140, 156, 172, 16, 204
    U, W_, F = 92, 100, 108
    B2U, B2W = 140, 156
    for f in range(4):
        a(f"ds_read_b128 {vr(B1+4*f,4)}, v5 offset:{TOFF['S1B1']+1024*f}")
    for Tt in range(2):
        for m in range(4):
            xs, xp = XS+4*Tt+m, XP+4*Tt+m
            f0 = F + 4*(m & 1)
            a(f"v_lshlrev_b32 v{f0}, 16, v{xs}\nv_and_b32 v{f0+1}, 0xffff0000, v{xs}")
            a(f"v_lshlrev_b32 v{f0+2}, 16, v{xp}\nv_and_b32 v{f0+3}, 0xffff0000, v{xp}")
            a(f"v_pk_add_f32 {vr(TT+4*(m&1),2)}, {vr(f0,2)}, {vr(f0+2,2)}")
            a(f"v_pk_add_f32 {vr(TT+4*(m&1)+2,2)}, {vr(f0,2)}, {vr(f0+2,2)} neg_lo:[0,1] neg_hi:[0,1]")
            a(f"v_cvt_pk_bf16_f32 v{U+4*Tt+m}, v{TT+4*(m&1)}, v{TT+4*(m&1)+1}")
            a(f"v_cvt_pk_bf16_f32 v{W_+4*Tt+m}, v{TT+4*(m&1)+2}, v{TT+4*(m&1)+3}")
        a(f"ds_write_b128 v6, {vr(U+4*Tt,4)} offset:{Tt*16*S1_P}")
        a(f"ds_write_b128 v6, {vr(W_+4*Tt,4)} offset:{S1_SEQ+Tt*16*S1_P}")
    a(f"s_lshl_b32 s{T0}, s{S_CH}, 12")
    k.srd(RA, S_H, 4096, add=f"s{T0}")
    a(f"s_add_u32 m0, s{S_LB}, {H_N+64}")
    for m in range(8):
        a(f"ds_read_b128 {vr(TW+4*m,4)}, v5 offset:{TOFF['S1TW']+1024*m}")
        if m & 1: k.vmem(f"buffer_load_dwordx4 v{V_L16}, {sr(RA,4)}, 0 offen offset:{(m>>1)*1024}{NT} lds", "h")
    a("s_waitcnt lgkmcnt(8)")
    for X in range(2):
        for Td in range(2):
            for h in range(2):
                a(f"ds_read_b64_tr_b16 {vr(AF+8*X+4*Td+2*h,2)}, v7 offset:{X*S1_SEQ+h*16*S1_P+32*Td}")
    a("v_mov_b32 v40, 0\nv_mov_b32 v41, 0\nv_mov_b32 v42, 0\nv_mov_b32 v43, 0")
    a(f"v_and_b32 v8, 31, v0\nv_lshl_add_u32 v8, v8, 4, s{S_LB}")
    a("s_waitcnt lgkmcnt(0)")
    k.stamp("s1tr")
    C1 = 76
    def c1(X, Td, Te, c): return C1 + (((X*2+Td)*2+Te)*2+c)*4
    for X in range(2):
        for Td in range(2):
            for Te in range(2):
                for c in range(2):
                    a(f"v_mfma_f32_16x16x32_bf16 {vr(c1(X,Td,Te,c),4)}, {vr(AF+8*X+4*Td,4)}, {vr(B1+8*Te+4*c,4)}, 0")
    for T1_ in range(2):
        for kk in range(2):
            a(f"ds_read_b128 {vr(B2U+8*T1_+4*kk,4)}, v5 offset:{TOFF['S1B2']+4096*T1_+1024*kk}")
    for T1_ in range(2):
        for kk in range(2):
            a(f"ds_read_b128 {vr(B2W+8*T1_+4*kk,4)}, v12 offset:{TOFF['S1B2']+4096*T1_+1024*kk}")
    for m in range(2):
        a(f"ds_write_b128 v8, v[40:43] offset:{m*XSTR+4096}")
    a(f"v_and_b32 v8, 15, v0\nv_lshl_add_u32 v11, v8, 2, s{S_LB}")
    a(f"ds_write_b32 v11, v40 offset:{H_N}")
    def za(X, Te, c): return c1(X, 0, Te, c)
    def twiddle1(X):
        for Te in range(2):
            for Td in range(2):
                cr, ci = c1(X,Td,Te,0), c1(X,Td,Te,1)
                tc, ts = TW + ((Td*2+Te)*2)*4, TW + ((Td*2+Te)*2+1)*4
                t = TT + 8*(Td & 1)
                for o in (0, 2):
                    a(f"v_pk_mul_f32 {vr(t+o,2)}, {vr(cr+o,2)}, {vr(tc+o,2)}")
                    a(f"v_pk_mul_f32 {vr(t+4+o,2)}, {vr(ci+o,2)}, {vr(tc+o,2)}")
                for o in (0, 2):
                    a(f"v_pk_fma_f32 {vr(t+o,2)}, {vr(ci+o,2)}, {vr(ts+o,2)}, {vr(t+o,2)}")
                    a(f"v_pk_fma_f32 {vr(t+4+o,2)}, {vr(cr+o,2)}, {vr(ts+o,2)}, {vr(t+4+o,2)} neg_lo:[1,0,0] neg_hi:[1,0,0]")
                for hh in range(2):
                    a(f"v_cvt_pk_bf16_f32 v{za(X,Te,0)+2*Td+hh}, v{t+2*hh}, v{t+2*hh+1}")
                    a(f"v_cvt_pk_bf16_f32 v{za(X,Te,1)+2*Td+hh}, v{t+4+2*hh}, v{t+4+2*hh+1}")
    twiddle1(0)
    k.stamp("s1tw")
    k.check_or_poll("pa", [pa_load], [f"v_cmp_ne_u32 vcc, s{S_TAG}, v14"])
    a(f"v_cmp_ne_u32 vcc, s{S_XCC}, v15")
    a(f"s_or_b32 s{T0}, vcc_lo, vcc_hi\ns_cmp_eq_u32 s{T0}, 0\ns_cselect_b32 s{S_MODE}, 1, 0")
    if FORCE_GLOBAL: a(f"s_mov_b32 s{S_MODE}, 0")
    a(f"s_lshl_b32 s{T0}, s{S_CB}, 8\ns_lshl_b32 s{T1}, s{S_RB}, 4\ns_add_u32 s{T0}, s{T0}, s{T1}\ns_lshl_b32 s{T1}, s{S_W}, 2\ns_add_u32 s{C0+1}, s{T0}, s{T1}")
    a(f"v_mov_b32 v9, s{C0+1}\nv_mov_b32 v10, s{S_TAG}\ns_movk_i32 s{T2}, {FL_F1}")
    def f1sig(sc):
        L = []
        if sc: L += xr_st(sc) + ["s_waitcnt vmcnt(0)"]
        return L + ["s_mov_b64 exec, 1", f"buffer_store_dword v10, v9, {sr(R_FL,4)}, s{T2} offen{sc}", "s_mov_b64 exec, -1"]
    k.dual(f1sig, "f1")
    k.stamp("mode")
    a(f"s_add_u32 m0, s{S_LB}, {H_S+64}")
    a(f"v_add_u32 v9, 4, v{V_L16}")
    for it in range(4):
        k.vmem(f"buffer_load_dwordx4 v9, {sr(RA,4)}, 0 offen offset:{it*1024} lds", "h")
    a("v_mov_b32 v10, 0")
    k.vmem(f"buffer_load_dword v{V_H01}, v10, {sr(RA,4)}, 0 offen", "h")
    twiddle1(1)
    a("s_waitcnt lgkmcnt(0)")
    C2 = 172
    def c2(X, T1_, Te): return C2 + ((X*2+T1_)*2+Te)*4
    for T1_ in range(2):
        for Te in range(2):
            for X in range(2):
                Bc = B2U if X == 0 else B2W
                a(f"v_mfma_f32_16x16x32_bf16 {vr(c2(X,T1_,Te),4)}, {vr(za(X,Te,0),4)}, {vr(Bc+8*T1_,4)}, 0")
                a(f"v_mfma_f32_16x16x32_bf16 {vr(c2(X,T1_,Te),4)}, {vr(za(X,Te,1),4)}, {vr(Bc+8*T1_+4,4)}, {vr(c2(X,T1_,Te),4)}")
    a(f"v_and_b32 v8, 7, v2\nv_and_b32 v9, 1, v3")
    a(f"s_lshl_b32 s{T0}, s{S_W}, 1\ns_sub_u32 s{T1}, 6, s{T0}")
    a(f"v_or_b32 v10, s{T0}, v9\nv_xor_b32 v10, v10, v8\nv_or_b32 v12, s{T1}, v9\nv_xor_b32 v12, v12, v8")
    a(f"v_lshlrev_b32 v8, 1, v2\nv_lshrrev_b32 v9, 1, v3\nv_add_u32 v8, v8, v9\nv_lshlrev_b32 v8, 7, v8")
    a(f"v_lshl_add_u32 v10, v10, 4, v8\nv_lshl_add_u32 v12, v12, 4, v8")
    a(f"v_add_u32 v10, {GST}, v10\nv_add_u32 v12, {GST+8192}, v12")
    for T1_ in range(2):
        for Te in range(2):
            A_, B_ = c2(0,T1_,Te), c2(1,T1_,Te)
            for o in (0, 2):
                a(f"v_pk_add_f32 {vr(TT+o,2)}, {vr(A_+o,2)}, {vr(B_+o,2)} neg_lo:[0,1] neg_hi:[0,1]")
                a(f"v_pk_add_f32 {vr(TT+4+o,2)}, {vr(A_+o,2)}, {vr(B_+o,2)}")
            for hh in range(2):
                a(f"v_cvt_pk_bf16_f32 v{GO+8*T1_+2*Te+hh}, v{TT+2*hh}, v{TT+2*hh+1}")
                a(f"v_cvt_pk_bf16_f32 v{GO+8*T1_+4+2*Te+hh}, v{TT+4+2*hh}, v{TT+4+2*hh+1}")
        a(f"ds_write_b128 v10, {vr(GO+8*T1_,4)} offset:{4096*T1_}")
        a(f"ds_write_b128 v12, {vr(GO+8*T1_+4,4)} offset:{4096*T1_}")
    a(f"s_movk_i32 s{C0}, {FL_F1}")
    f1_load = f"buffer_load_dword v13, v{V_FOFF}, {sr(R_FL,4)}, s{C0} offen sc1"
    k.vmem(f1_load, "f1l")
    a(f"v_lshrrev_b32 v8, 3, v0\nv_and_b32 v9, 7, v0")
    a(f"v_lshrrev_b32 v10, 1, v8\nv_xor_b32 v10, v10, v9")
    a(f"s_lshr_b32 s{T0}, s{S_W}, 1\ns_lshl_b32 s{T0}, s{T0}, 13\ns_and_b32 s{T1}, s{S_W}, 1\ns_lshl_b32 s{T1}, s{T1}, 12\ns_add_u32 s{T0}, s{T0}, s{T1}\ns_add_u32 s{T0}, s{T0}, {GST}")
    a(f"v_lshlrev_b32 v14, 7, v8\nv_add_u32 v14, s{T0}, v14")
    a(f"v_xor_b32 v12, 4, v10\nv_lshl_add_u32 v10, v10, 4, v14\nv_lshl_add_u32 v12, v12, 4, v14")
    a(f"s_lshl_b32 s{T0}, s2, 7\ns_sub_u32 s{T1}, {2045*32}, s{T0}\ns_cmp_ge_u32 s{S_W}, 2\ns_cselect_b32 s{T0}, s{T1}, s{T0}")
    a(f"s_and_b32 s{T1}, s{S_W}, 1\ns_lshl_b32 s{T1}, s{T1}, 21\ns_add_u32 s{T0}, s{T0}, s{T1}")
    a(f"v_lshlrev_b32 v{V_GOFF}, 16, v8\nv_lshl_add_u32 v{V_GOFF}, v9, 4, v{V_GOFF}\nv_add_u32 v{V_GOFF}, s{T0}, v{V_GOFF}")
    a(f"s_cmp_ge_u32 s{S_W}, 2\ns_cselect_b32 s{T0}, 0, 1\ns_or_b32 s{T0}, s{T0}, s2")
    a(f"s_cmp_eq_u32 s{T0}, 0\ns_cselect_b32 s{T0}, 6, 8")
    a(f"v_cmp_le_u32 vcc, s{T0}, v9")
    a(f"v_add_u32 v14, {(1024-2048)*32 & 0xffffffff}, v{V_GOFF}")
    a(f"v_cndmask_b32 v{V_GOFF}, v{V_GOFF}, v14, vcc")
    a("s_waitcnt lgkmcnt(0)")
    a("s_barrier")
    for i in range(4):
        a(f"ds_read_b128 {vr(GO+4*i,4)}, v{10 if (i&1)==0 else 12} offset:{1024*i}")
    k.stamp("s1")
    a(f"v_and_b32 v6, 1, v0\nv_mul_u32_u24 v6, {XSTR}, v6")
    a("v_bfe_u32 v7, v0, 1, 3\nv_lshlrev_b32 v7, 6, v7\nv_sub_u32 v6, v6, v7")
    a("v_lshrrev_b32 v7, 4, v0\nv_lshl_add_u32 v6, v7, 4, v6")
    a(f"s_add_u32 s{T0}, s{S_LB}, {4032-3584}")
    a(f"v_add_u32 v6, s{T0}, v6")
    a(f"v_and_b32 v8, 15, v0\nv_and_b32 v9, 1, v0\nv_mul_u32_u24 v9, {H_N-H_S+4}, v9")
    a("v_lshl_add_u32 v8, v8, 2, v9\nv_lshl_add_u32 v8, v7, 4, v8")
    a(f"s_add_u32 s{T0}, s{S_LB}, {H_S}")
    a(f"v_add_u32 v8, s{T0}, v8")
    a(f"v_add_u32 v5, s{S_LB}, v{V_L16}")
    k.srd(RC, S_WS, 4 << 20, add=WS_G)
    a("s_waitcnt lgkmcnt(0)")
    for i in range(4):
        a(f"s_mov_b32 s{T2}, {i*8*65536}")
        k.vmem(f"buffer_store_dwordx4 {vr(GO+4*i,4)}, v{V_GOFF}, {sr(RC,4)}, s{T2} offen sc1", "g")
    a(f"s_lshl_b32 s{T0}, s{S_CH}, 12")
    k.srd(RB, S_WS, 4096, add=f"s{T0}")
    a(f"s_cmp_eq_u32 s{S_MODE}, 0\ns_cselect_b32 s{S_ZO}, {4<<20}, 0\ns_add_u32 s{T0}, s{T0}, s{S_ZO}")
    k.srd(RE, S_WS, 4096, add=f"s{T0}")
    k.check_or_poll("f1l", [f1_load], [f"v_cmp_ne_u32 vcc, s{S_TAG}, v13"])
    k.stamp("f1")
    XA, XB = 16, 32
    for it in range(4):
        k.vmem(f"buffer_load_dwordx4 {vr(XA+4*it,4)}, v{V_L16}, {sr(RB,4)}, 0 offen offset:{it*1024} sc1", "xl")
        k.vmem(f"buffer_load_dword v{XB+it}, v{V_L16}, {sr(RB,4)}, 0 offen offset:{it*1024+16} sc1", "xl")
    a(f"v_and_b32 v9, 15, v0\nv_cmp_eq_u32 vcc, 15, v9")
    a(f"v_cndmask_b32 v9, 0, v{V_H01}, vcc")
    a(f"ds_write_b32 v11, v9 offset:{H_S}")
    k.wait("xl")
    k.stamp("xl")
    lb = k.lab("Lf2")
    a(f"v_mov_b32 v9, {LDS_CNT}\nv_mov_b32 v12, 1\nv_mov_b32 v10, s{S_TAG}")
    a("s_mov_b64 exec, 1")
    a("ds_add_rtn_u32 v12, v9, v12")
    a("s_waitcnt lgkmcnt(0)")
    a(f"v_readfirstlane_b32 s{T0}, v12")
    a(f"s_cmp_lg_u32 s{T0}, 3\ns_cbranch_scc1 {lb}")
    a(f"s_lshr_b32 s{T0}, s2, 4\ns_lshl_b32 s{T0}, s{T0}, 7\ns_and_b32 s{T1}, s2, 15\ns_lshl_b32 s{T1}, s{T1}, 2\ns_add_u32 s{T0}, s{T0}, s{T1}\ns_add_u32 s{T0}, s{T0}, {FL_F2}")
    a(f"v_mov_b32 v9, s{T0}")
    k.vmem(f"buffer_store_dword v10, v9, {sr(R_FL,4)}, 0 offen sc1", "f2", optional=True)
    a(f"{lb}:")
    a("s_mov_b64 exec, -1")
    for it in range(4):
        a(f"ds_write_b128 v5, {vr(XA+4*it,4)} offset:{XSTR+it*1024}")
        for i in range(4):
            hi = XA+4*it+i+1 if i < 3 else XB+it
            a(f"v_alignbit_b32 v{44+4*(it&1)+i}, v{hi}, v{XA+4*it+i}, 16")
        a(f"ds_write_b128 v5, {vr(44+4*(it&1),4)} offset:{it*1024}")
    ACC = 16
    SET = [48, 112]
    def xf(s, u): return SET[s] + 4*u
    def hf(s, J): return SET[s] + 32 + 4*J
    def reads(s, jj):
        L = []
        for u in range(8):
            L.append(f"ds_read_b64 {vr(hf(s,u),2)}, v8 offset:{512*u+64*jj}")
            L.append(f"ds_read_b64 {vr(hf(s,u)+2,2)}, v8 offset:{512*u+64*jj+8}")
            L.append(f"ds_read_b128 {vr(xf(s,u),4)}, v6 offset:{512*(7-u)+64*jj}")
        return L
    def mfmas(s, first):
        L = []; seen = set()
        for J in range(8):
            for u in range(8 - J):
                c = u + J
                cin = vr(ACC+4*c,4) if not (first and c not in seen) else "0"
                seen.add(c)
                L.append(f"v_mfma_f32_16x16x32_bf16 {vr(ACC+4*c,4)}, {vr(xf(s,u),4)}, {vr(hf(s,J),4)}, {cin}")
        return L
    a("s_waitcnt lgkmcnt(0)")
    for r in reads(0, 0): a(r)
    k.stamp("preloop")
    f2_addr = [f"v_lshrrev_b32 v9, 2, v0", f"v_lshlrev_b32 v9, 7, v9", f"v_and_b32 v10, 3, v0", f"v_lshl_add_u32 v11, v10, 4, v9"]
    f2_load = f"buffer_load_dwordx4 v[176:179], v11, {sr(R_FL,4)}, s{C0} offen sc1"
    f2_cmp = [f"v_xor_b32 v{176+i}, s{S_TAG}, v{176+i}" for i in range(4)] + ["v_or3_b32 v176, v176, v177, v178", "v_or_b32 v176, v176, v179", "v_cmp_ne_u32 vcc, 0, v176"]
    for jj in range(8):
        s = jj & 1
        a("s_waitcnt lgkmcnt(0)")
        k.stamp(f"jj{jj}")
        if jj == JJ_F2:
            k.wait("f2l")
            for t in f2_cmp: a(t)
            a(f"s_or_b32 s{S_GD}, vcc_lo, vcc_hi")
            k.stamp("f2")
            a(f"s_lshl_b32 s{T0}, s{S_E}, 16\ns_add_u32 s{T0}, s{T0}, {WS_G}")
            k.srd(RB, S_WS, 65536, add=f"s{T0}")
            a(f"s_cmp_eq_u32 s{S_GD}, 0\ns_cselect_b32 s{RB+2}, 65536, 0")
            a(f"s_mul_i32 s{T0}, s{S_W}, {16*S2_PIECE}\ns_add_u32 s{T0}, s{T0}, {R2}\ns_lshl_b32 s{T1}, s{S_W}, 14")
        R = reads(1 - s, jj + 1) if jj < 7 else []
        M = mfmas(s, jj == 0)
        extra = []
        if jj == 0:
            extra.append([f"s_movk_i32 s{T4}, 0x1000"] + k.srd_lines(RA, S_Q, 4 << 20))
            for t in range(4):
                so = "0" if t < 2 else f"s{T4}"
                extra.append([("q", f"buffer_load_dwordx4 {vr(V_Q+4*t,4)}, v{V_QOFF}, {sr(RA,4)}, {so} offen offset:{(t&1)*2048}{NT}")])
        if jj == 1:
            extra.append([f"s_lshl_b32 s{T0}, s{S_W}, 10", f"s_lshl_b32 s{T1}, s{S_R}, 12", f"s_add_u32 s{T1}, s{T1}, s{T0}"])
            for i, (off, rdep) in enumerate(((TOFF['S2A1'], True), (TOFF['S2TW'], True), (TOFF['S2B2'], False))):
                extra.append([f"s_add_u32 m0, s{T0}, {R3 + 4096*i}", f"s_add_u32 s{T2}, s{T1 if rdep else T0}, {off}",
                              ("t2", f"buffer_load_dwordx4 v{V_L16}, {sr(R_TAB,4)}, s{T2} offen lds")])
        if jj == JJ_F2LD:
            extra.append(f2_addr + [f"s_movk_i32 s{C0}, {FL_F2}", ("f2l", f2_load)])
        if jj == JJ_F2:
            for i in range(16):
                extra.append([f"s_add_u32 m0, s{T0}, {i*S2_PIECE}", f"s_add_u32 s{T2}, s{T1}, {i*1024}",
                              ("gd", f"buffer_load_dwordx4 v{V_L16}, {sr(RB,4)}, s{T2} offen sc1 lds")])
        if jj == 5 and WBL2:
            lbw = k.lab("Lwb")
            extra.append([f"s_lshr_b32 s{T2}, s2, 3", f"s_or_b32 s{T2}, s{T2}, s{S_W}", f"s_cmp_lg_u32 s{T2}, 0", f"s_cbranch_scc1 {lbw}", ("wb", "buffer_wbl2 sc1", True), f"{lbw}:"])
        ri = 0; ei = 0
        for m in M:
            a(m)
            if ri < len(R): a(R[ri]); ri += 1
            if ei < len(extra) and (ri >= 8 or not R):
                for t in extra[ei]:
                    if isinstance(t, tuple): k.vmem(t[1], t[0], optional=(len(t) > 2))
                    else: a(t)
                ei += 1
        assert ei == len(extra)
    k.stamp("loop")
    a("v_and_b32 v2, 15, v0\nv_lshrrev_b32 v3, 4, v0")
    a("v_lshlrev_b32 v4, 2, v2\nv_lshl_add_u32 v4, v3, 7, v4")
    a(f"s_add_u32 s{T0}, s{S_LB}, {XSTR+4092-64-3584}")
    a(f"v_sub_u32 v5, s{T0}, v4")
    KV = 48
    for c in range(8):
        a(f"ds_read_b32 v{KV+2*c}, v5 offset:{3584-512*c+64}")
        a(f"ds_read_b32 v{KV+2*c+1}, v5 offset:{3584-512*c}")
    TM = 64; ZS = 80
    for c in range(8):
        if c in (0, 4): a(f"s_waitcnt lgkmcnt({8 if c == 0 else 0})")
        R0, R1 = KV+2*c, KV+2*c+1
        t = TM + 4*(c & 1)
        a(f"v_and_b32 v{t}, 0xffff0000, v{R0}")
        a(f"v_lshlrev_b32 v{t+1}, 16, v{R0}")
        a(f"v_and_b32 v{t+2}, 0xffff0000, v{R1}")
        a(f"v_lshlrev_b32 v{t+3}, 16, v{R1}")
        for j in range(4):
            a(f"v_fmac_f32 v{ACC+4*c+j}, s{S_DV}, v{t+j}")
        a(f"v_cvt_pk_bf16_f32 v{ZS+2*c}, v{ACC+4*c}, v{ACC+4*c+1}")
        a(f"v_cvt_pk_bf16_f32 v{ZS+2*c+1}, v{ACC+4*c+2}, v{ACC+4*c+3}")
    def zt_st(sc):
        L = []
        for c in range(8):
            L.append(f"buffer_store_dword v{ZS+2*c}, v4, {sr(RE,4)}, 0 offen offset:{512*c}{sc}")
            L.append(f"buffer_store_dword v{ZS+2*c+1}, v4, {sr(RE,4)}, 0 offen offset:{512*c+64}{sc}")
        return L
    k.dual(zt_st, "zs")
    k.stamp("zst")
    lg, lj = k.lab("Lgl"), k.lab("Lgj")
    a(f"s_cmp_lg_u32 s{S_GD}, 0\ns_cbranch_scc1 {lg}")
    a(f"{lj}:")
    t = k.tail
    t(f"{lg}:")
    for x in f2_addr + [f"s_movk_i32 s{C0}, {FL_F2}"] + k.poll_lines([f2_load], f2_cmp, sleep=8): t(x)
    t(f"s_mov_b32 s{RB+2}, 65536")
    t(f"s_mul_i32 s{T0}, s{S_W}, {16*S2_PIECE}\ns_add_u32 s{T0}, s{T0}, {R2}\ns_lshl_b32 s{T1}, s{S_W}, 14")
    for i in range(16):
        t(f"s_add_u32 m0, s{T0}, {i*S2_PIECE}\ns_add_u32 s{T2}, s{T1}, {i*1024}\nbuffer_load_dwordx4 v{V_L16}, {sr(RB,4)}, s{T2} offen sc1 lds")
    t(f"s_waitcnt vmcnt(0)\ns_branch {lj}")
    A1, TW2, B2 = 16, 32, 96
    a(f"v_add_u32 v5, {R3}, v{V_L16}")
    a("v_bfe_u32 v7, v0, 2, 2\nv_lshl_add_u32 v7, v3, 2, v7")
    a(f"v_mul_u32_u24 v7, {S2_PIECE}, v7")
    a("v_and_b32 v8, 3, v0\nv_lshl_add_u32 v7, v8, 3, v7")
    a(f"s_lshl_b32 s{T3}, s{S_W}, 8\ns_add_u32 s{T0}, s{T3}, {R2}")
    a(f"v_add_u32 v7, s{T0}, v7")
    a(f"s_lshl_b32 s{T0}, s{S_W}, 10\ns_add_u32 s{T0}, s{T0}, {R3+4096}")
    a(f"v_lshl_add_u32 v6, v3, 4, s{T0}")
    a("v_lshlrev_b32 v9, 13, v3\nv_lshl_add_u32 v9, v2, 4, v9")
    a(f"s_add_u32 s{T0}, s{T3}, {ZBUF}")
    a(f"v_add_u32 v9, s{T0}, v9")
    k.wait("gd")
    a("s_barrier")
    k.stamp("s2go")
    P2R, ACC2, BF, t0r, t1r, ur = 96, 128, 192, 216, 220, 228
    lq = []
    def ld(text, tag): a(text); lq.append(tag)
    def lwait(tag):
        idx = max(i for i, t in enumerate(lq) if t == tag)
        a(f"s_waitcnt lgkmcnt({min(15, len(lq) - 1 - idx)})")
    def acc(i, c): return ACC2 + (i*2+c)*4
    def rd(i):
        b = BF + 8*(i % 3)
        for ks in range(2):
            for h in range(2):
                ld(f"ds_read_b64_tr_b16 {vr(b+4*ks+2*h,2)}, v7 offset:{(32*ks+16*h)*S2_PIECE+i*32}", f"rd{i}")
    def tw_rd(i):
        for m in (2*i, 2*i+1): ld(f"ds_read_b128 {vr(TW2+4*m,4)}, v6 offset:{64*m}", f"tw{i}")
    def mf(i):
        b = BF + 8*(i % 3)
        for c in range(2):
            a(f"v_mfma_f32_16x16x32_bf16 {vr(acc(i,c),4)}, {vr(A1+4*c,4)}, {vr(b,4)}, 0")
        for c in range(2):
            a(f"v_mfma_f32_16x16x32_bf16 {vr(acc(i,c),4)}, {vr(A1+8+4*c,4)}, {vr(b+4,4)}, {vr(acc(i,c),4)}")
    def twid(i):
        cr, ci = acc(i,0), acc(i,1)
        tc, ts = TW2 + 8*i, TW2 + 8*i + 4
        t = t0r if (i & 1) == 0 else t1r
        for o in (0, 2):
            a(f"v_pk_mul_f32 {vr(t+o,2)}, {vr(cr+o,2)}, {vr(tc+o,2)}")
            a(f"v_pk_mul_f32 {vr(ur+o,2)}, {vr(ci+o,2)}, {vr(tc+o,2)}")
        for o in (0, 2):
            a(f"v_pk_fma_f32 {vr(t+o,2)}, {vr(ci+o,2)}, {vr(ts+o,2)}, {vr(t+o,2)}")
            a(f"v_pk_fma_f32 {vr(cr+o,2)}, {vr(cr+o,2)}, {vr(ts+o,2)}, {vr(ur+o,2)} neg_lo:[1,0,0] neg_hi:[1,0,0]")
    def pack(ip):
        for j in range(4):
            a(f"v_cvt_pk_bf16_f32 v{P2R+(j*2+0)*4+ip}, v{t0r+j}, v{t1r+j}")
            a(f"v_cvt_pk_bf16_f32 v{P2R+(j*2+1)*4+ip}, v{acc(2*ip,0)+j}, v{acc(2*ip+1,0)+j}")
    for f in range(4): ld(f"ds_read_b128 {vr(A1+4*f,4)}, v5 offset:{1024*f}", "a1")
    rd(0); rd(1); tw_rd(0); tw_rd(1)
    for i in range(8):
        lwait(f"rd{i}")
        mf(i)
        if i + 2 < 8: rd(i + 2)
        if i + 2 < 8: tw_rd(i + 2)
        if i >= 2:
            lwait(f"tw{i-2}")
            twid(i - 2)
            if (i - 2) & 1: pack((i - 2) >> 1)
    for f in range(4): ld(f"ds_read_b128 {vr(A1+4*f,4)}, v5 offset:{8192+1024*f}", "b2")
    B2 = A1
    lwait("tw7")
    twid(6); twid(7); pack(3)
    for j in range(4):
        for c in range(2):
            a(f"ds_write_b128 v9, {vr(P2R+(j*2+c)*4,4)} offset:{j*2048+c*1024}")
    k.wait("zs")
    a(f"v_mov_b32 v10, s{C0+1}\nv_mov_b32 v11, s{S_TAG}\ns_movk_i32 s{T2}, {FL_F3}")
    k.dual(lambda sc: ["s_mov_b64 exec, 1", f"buffer_store_dword v11, v10, {sr(R_FL,4)}, s{T2} offen{sc}", "s_mov_b64 exec, -1"], "f3")
    a(f"s_lshl_b32 s{T0}, s{S_W}, 13\ns_add_u32 s{T0}, s{T0}, {ZBUF}")
    a(f"v_add_u32 v10, s{T0}, v{V_L16}")
    a("v_lshlrev_b32 v11, 18, v2\nv_lshl_add_u32 v11, v3, 3, v11")
    a(f"s_lshl_b32 s{T0}, s{S_R}, 4\ns_lshl_b32 s{T1}, s{S_W}, 2\ns_add_u32 s{T0}, s{T0}, s{T1}\ns_lshl_b32 s{T0}, s{T0}, 12")
    a(f"s_lshl_b32 s{T1}, s{S_E}, 5\ns_add_u32 s{T0}, s{T0}, s{T1}\ns_add_u32 s{T3}, s{T0}, 2048")
    k.srd(RC, S_OUT, 8 << 20)
    k.srd(RB, S_WS, 4 << 20, add=f"s{S_ZO}")
    a("s_waitcnt lgkmcnt(0)")
    a("s_barrier")
    k.stamp("s2b")
    ZF = 32
    for jj in range(4):
        for c in range(2):
            a(f"ds_read_b128 {vr(ZF+(jj*2+c)*4,4)}, v10 offset:{jj*2048+c*1024}")
    a(f"s_movk_i32 s{C0}, {FL_F3}")
    f3_load = f"buffer_load_dword v12, v{V_FOFF}, {sr(R_FL,4)}, s{C0} offen sc1"
    k.vmem(f3_load, "f3l")
    C2b = 64
    for jj in range(4):
        a(f"s_waitcnt lgkmcnt({6-2*jj})")
        for T1_ in range(2):
            d = C2b + (jj*2+T1_)*4
            a(f"v_mfma_f32_16x16x32_bf16 {vr(d,4)}, {vr(ZF+(jj*2)*4,4)}, {vr(B2+8*T1_,4)}, 0")
            a(f"v_mfma_f32_16x16x32_bf16 {vr(d,4)}, {vr(ZF+(jj*2+1)*4,4)}, {vr(B2+8*T1_+4,4)}, {vr(d,4)}")
    k.check_or_poll("f3l", [f3_load], [f"v_cmp_ne_u32 vcc, s{S_TAG}, v12"])
    ZR = 112
    for c in range(8):
        a(f"s_mov_b32 s{T1}, {c*4096}")
        k.vmem(f"buffer_load_dwordx2 {vr(ZR+2*c,2)}, v{V_ZOFF}, {sr(RB,4)}, s{T1} offen sc1", "zl")
    O = 96
    for jj in range(4):
        for T1_ in range(2):
            d = C2b + (jj*2+T1_)*4; o = O + 2*(jj*2+T1_)
            a(f"v_cvt_pk_bf16_f32 v{o}, v{d}, v{d+1}")
            a(f"v_cvt_pk_bf16_f32 v{o+1}, v{d+2}, v{d+3}")
    k.stamp("o2")
    k.wait("zl")
    k.stamp("zl")
    QF0, OUT3 = 128, 144
    for t in range(4):
        for m in range(4):
            zf = QF0 + 4*(m & 1); qf = zf + 2
            for h in range(2):
                c = 2*m + h
                src = ZR + 2*c + (t >> 1)
                if t & 1: a(f"v_and_b32 v{zf+h}, 0xffff0000, v{src}")
                else:     a(f"v_lshlrev_b32 v{zf+h}, 16, v{src}")
            a(f"v_lshlrev_b32 v{qf}, 16, v{V_Q+4*t+m}")
            a(f"v_and_b32 v{qf+1}, 0xffff0000, v{V_Q+4*t+m}")
            a(f"v_pk_mul_f32 {vr(qf,2)}, {vr(qf,2)}, {vr(zf,2)}")
            a(f"v_cvt_pk_bf16_f32 v{OUT3+4*t+m}, v{qf}, v{qf+1}")
        a(f"s_mov_b32 s{T1}, {t*4096}")
        k.vmem(f"buffer_store_dwordx4 {vr(OUT3+4*t,4)}, v{V_OOFF}, {sr(RC,4)}, s{T1} offen{O3SC}", "o3")
    k.stamp("p3")
    for jj in range(4):
        for T1_ in range(2):
            o = O + 2*(jj*2+T1_)
            a(f"s_add_u32 s{T1}, s{T3}, {jj*4096 + T1_*(16*64*4096)}")
            k.vmem(f"buffer_store_dwordx2 {vr(o,2)}, v11, {sr(RC,4)}, s{T1} offen{O2SC}", "o2")
    lb = k.lab("Lne")
    a(f"s_or_b32 s{T0}, s2, s{S_W}\ns_cmp_lg_u32 s{T0}, 0\ns_cbranch_scc1 {lb}")
    a(f"v_mov_b32 v8, {FL_EPOCH}\nv_mov_b32 v9, s{S_TAG}")
    a("s_mov_b64 exec, 1")
    a(f"buffer_store_dword v9, v8, {sr(R_FL,4)}, 0 offen")
    a("s_mov_b64 exec, -1")
    a(f"{lb}:")
    if PROF:
        k.stamp("fin0")
        a("s_waitcnt vmcnt(0)")
        k.stamp("fin")
        a(f"s_memrealtime s[76:77]")
        a("s_waitcnt lgkmcnt(0)")
        a(f"s_add_u32 s{C0}, s{S_WS}, {64<<20}\ns_addc_u32 s{C0+1}, s{S_WS+1}, 0")
        a(f"s_lshl_b32 s{T0}, s{S_SIG}, 6\nv_mov_b32 v0, s{T0}")
        a("s_mov_b64 exec, 1")
        for i in range(k.nstamp):
            a(f"s_sub_u32 s{T1}, s{ST0+2*i}, s{ST0}\nv_mov_b32 v4, s{T1}\nglobal_store_dword v0, v4, s[{C0}:{C0+1}] offset:{4*i}\ns_nop 1")
        a(f"v_mov_b32 v4, s78\nglobal_store_dword v0, v4, s[{C0}:{C0+1}] offset:48\ns_nop 1")
        a(f"v_mov_b32 v4, s76\nglobal_store_dword v0, v4, s[{C0}:{C0+1}] offset:52\ns_nop 1")
        a(f"v_mov_b32 v4, {k.nstamp}\nglobal_store_dword v0, v4, s[{C0}:{C0+1}] offset:56\ns_nop 1")
        a(f"s_lshl_b32 s{T1}, s{S_GD}, 1\ns_or_b32 s{T1}, s{T1}, s{S_MODE}\ns_min_u32 s{T1}, s{T1}, 3")
        a(f"v_mov_b32 v4, s{T1}\nglobal_store_dword v0, v4, s[{C0}:{C0+1}] offset:60")
        print("stamps:", k.names)
    a("s_endpgm")
    return k.a.lines + k.tail.lines + ["L_end:", "s_endpgm"]

def main(out_path):
    lines = fix_hazards(build())
    hdr = open(os.path.join(os.path.dirname(__file__), "header.txt")).read().rstrip("\n").split("\n")
    L = list(hdr)
    L.append(f"; @launch grid=(256,1,1) block=(256,1,1) lds={LDS_BYTES}")
    L += ['.amdgcn_target "amdgcn-amd-amdhsa--gfx950"', ".text", f".globl {KNAME}", ".p2align 8", f".type {KNAME},@function", f"{KNAME}:"]
    L += lines
    L += ["L_code_end:", ".p2align 8", ".type L_tables,@object", "L_tables:"] + TAB_LINES + [".size L_tables, .-L_tables"]
    L += ['.section .rodata,"a"', ".p2align 6", f".amdhsa_kernel {KNAME}", "  .amdhsa_next_free_vgpr 256", "  .amdhsa_next_free_sgpr 102",
          "  .amdhsa_accum_offset 256", "  .amdhsa_group_segment_fixed_size 0", "  .amdhsa_kernarg_size 112",
          "  .amdhsa_user_sgpr_count 2", "  .amdhsa_user_sgpr_kernarg_segment_ptr 1", "  .amdhsa_system_sgpr_workgroup_id_x 1",
          "  .amdhsa_float_denorm_mode_32 3", ".end_amdhsa_kernel"]
    open(out_path, "w").write("\n".join(L) + "\n")

if __name__ == "__main__":
    main(sys.argv[1] if len(sys.argv) > 1 else f"cdna_kernels/{NAME}.s")
```

```python
import sys, os
sys.path.insert(0, os.path.dirname(__file__))
from asmlib import *
import tables

NAME = "concat_heads__ssm_conv_h3__spectral_fnet__prompt"
KNAME = NAME + "_kernel"
WS_XR, WS_ZT, WS_G, WS_FL = 0, 0, 8 << 20, 12 << 20
FL_EPOCH, FL_A, FL_F1, FL_F3, FL_F2 = 0, 4096, 8192, 12288, 16384
SRD3 = "0x20000"
E = os.environ.get
PROF = E("PROF") == "1"
NT = " nt" if E("NT", "1") == "1" else ""
NTP = " nt" if E("NTP", "1") == "1" else ""
STAMPS = set(E("STAMPS", "entry,s1go,s1,kv,p1c,f1,preloop,loop,s2go,o2,fin").split(","))
FORCE_GLOBAL = E("FORCE_GLOBAL") == "1"
JJ_SIG = int(E("JJ_SIG", 2)); JJ_F2LD = int(E("JJ_F2LD", 6)); JJ_F2 = int(E("JJ_F2", 7))
O3SC = E("O3SC", " sc1"); O2SC = E("O2SC", ""); WBL2 = int(E("WBL2", 0))

T = tables.build(four=True)
TAB_ORDER = ['S1B1', 'S1TW', 'S1B2', 'S2A1', 'S2TW', 'S2B2']
TAB_LINES, TOFF, TAB_BYTES = tables.emit_tables(T, TAB_ORDER)

XSTR = 4640
H_S = 2 * XSTR
H_N = H_S + 4224
CH_LDS = H_N + 4160
R2 = 4 * CH_LDS
S1_P = 96; S1_SEQ = 32 * S1_P; S1_WAVE = 2 * S1_SEQ
R2_S1TAB = R2 + 4 * S1_WAVE
GST = R2 + 45056
S2_PIECE = 1056
R3 = R2 + 64 * S2_PIECE
LDS_CNT = R3 + 12288
LDS_BYTES = LDS_CNT + 64
ZBUF = 0

S_Q, S_K, S_V, S_SK, S_H, S_D, S_X = 4, 6, 8, 10, 12, 14, 16
S_TABP = 18
S_OUT, S_WS = 20, 22
S_CB, S_RB, S_W, S_TAG, S_MODE, S_CH = 24, 25, 26, 27, 28, 29
S_XCC, S_SIG, S_P, S_LB, S_DV, S_E, S_R = 30, 31, 32, 33, 34, 35, 3
RA, RB, RC, RD, RE, R_FL, R_TAB = 36, 40, 44, 48, 52, 56, 60
T0, T1, T2, T3, T4, S_GD = 64, 65, 66, 67, 68, 69
C0 = 70
S_ZO = 75
S_DBG = 76
S_LAST = 74
ST0 = 80
V_Q = 240
V_ZOFF, V_OOFF, V_QOFF, V_FOFF, V_L16 = 232, 233, 234, 235, 236
V_DUM = 228
V_GOFF, V_XRO, V_XPO, V_H01 = 224, 225, 226, 227

class K:
    def __init__(self):
        self.a = Asm(); self.tail = Asm()
        self.vm = []; self.nlab = 0; self.nstamp = 0; self.names = []
    def lab(self, p="L"):
        self.nlab += 1; return f"{p}_{self.nlab}"
    def vmem(self, text, tag, optional=False):
        self.a(text); self.vm.append((tag, optional))
    def count_after(self, tag):
        idx = max(i for i, (t, o) in enumerate(self.vm) if t == tag)
        n = sum(1 for (t, o) in self.vm[idx+1:] if not o)
        assert n <= 63, n
        return n
    def wait(self, tag, lgkm=None):
        self.a(f"s_waitcnt vmcnt({self.count_after(tag)})" + (f" lgkmcnt({lgkm})" if lgkm is not None else ""))
    def srd_lines(self, d, base, nbytes, add=None):
        if add is None: L = [f"s_mov_b32 s{d}, s{base}", f"s_mov_b32 s{d+1}, s{base+1}"]
        else: L = [f"s_add_u32 s{d}, s{base}, {add}", f"s_addc_u32 s{d+1}, s{base+1}, 0"]
        return L + [f"s_mov_b32 s{d+2}, {nbytes}", f"s_mov_b32 s{d+3}, {SRD3}"]
    def srd(self, d, base, nbytes, add=None):
        for t in self.srd_lines(d, base, nbytes, add): self.a(t)
    def stamp(self, name=""):
        if PROF and name in STAMPS:
            self.names.append(name)
            assert self.nstamp < 11
            self.a(f"s_memtime s[{ST0+2*self.nstamp}:{ST0+2*self.nstamp+1}]")
            self.nstamp += 1
    def dual(self, fn, tag):
        lg, lj = self.lab("Lg"), self.lab("Lj")
        a = self.a
        a(f"s_cmp_eq_u32 s{S_MODE}, 0")
        a(f"s_cbranch_scc1 {lg}")
        for t in fn(""):
            if t.startswith(("buffer_", "global_")): self.vmem(t, tag)
            else: a(t)
        a(f"{lj}:")
        self.tail(f"{lg}:")
        for t in fn(" sc1"): self.tail(t)
        self.tail(f"s_branch {lj}")
    def poll_lines(self, loads, cmps, sleep=1):
        lp, ok = self.lab("Lp"), self.lab("Lok")
        L = [f"s_mov_b32 s{T4}, 0x100000", f"{lp}:"] + loads + ["s_waitcnt vmcnt(0)"] + cmps
        L += [f"s_cbranch_vccz {ok}", f"s_sleep {sleep}", f"s_sub_u32 s{T4}, s{T4}, 1", f"s_cmp_lg_u32 s{T4}, 0", f"s_cbranch_scc1 {lp}", f"{ok}:"]
        return L
    def poll(self, loads, cmps, sleep=1):
        for t in self.poll_lines(loads, cmps, sleep): self.a(t)
    def check_or_poll(self, tag, loads, cmps, sleep=1):
        lg, lj = self.lab("Lr"), self.lab("Lrj")
        self.wait(tag)
        for t in cmps: self.a(t)
        self.a(f"s_cbranch_vccnz {lg}")
        self.a(f"{lj}:")
        self.tail(f"{lg}:")
        for t in self.poll_lines(loads, cmps, sleep): self.tail(t)
        self.tail(f"s_branch {lj}")

def build():
    k = K(); a = k.a
    KR, VR, WR = 16, 44, 60
    XS, XP = 76, 84
    OUT = V_Q
    a("s_cmp_ge_u32 s2, 256")
    a("s_cbranch_scc1 L_end")
    if PROF: a(f"s_memrealtime s[78:79]")
    k.stamp("entry")
    a("s_load_dwordx16 s[4:19], s[0:1], 0")
    a("s_load_dwordx2 s[20:21], s[0:1], 88")
    a("s_load_dwordx2 s[22:23], s[0:1], 104")
    a("v_lshrrev_b32 v1, 6, v0\nv_and_b32 v0, 63, v0")
    a(f"s_getpc_b64 s[{C0}:{C0+1}]")
    a("L_pc0:")
    a(f"v_readfirstlane_b32 s{S_W}, v1")
    a(f"v_lshlrev_b32 v{V_L16}, 4, v0")
    a(f"s_lshr_b32 s{T1}, s2, 3\ns_lshl_b32 s{T1}, s{T1}, 2\ns_add_u32 s{T1}, s{T1}, s{S_W}\ns_and_b32 s{T1}, s{T1}, 31\ns_lshl_b32 s{T1}, s{T1}, 10")
    a(f"s_min_u32 s{T1}, s{T1}, L_code_end-L_pc0-1024")
    a(f"s_add_u32 s{C0}, s{C0}, s{T1}\ns_addc_u32 s{C0+1}, s{C0+1}, 0")
    k.vmem(f"global_load_dwordx4 {vr(V_DUM,4)}, v{V_L16}, s[{C0}:{C0+1}]", "cp")
    a(f"s_getpc_b64 s[{C0+4}:{C0+5}]")
    a(f"s_add_u32 s{C0+4}, s{C0+4}, L_tables-.\ns_addc_u32 s{C0+5}, s{C0+5}, 0")
    k.srd(R_TAB, C0+4, TAB_BYTES)
    a(f"s_getreg_b32 s{S_XCC}, hwreg(HW_REG_XCC_ID, 0, 4)")
    a(f"s_and_b32 s{S_CB}, s2, 7\ns_lshr_b32 s{S_RB}, s2, 3\ns_lshr_b32 s{T0}, s{S_RB}, 4")
    a(f"s_lshl_b32 s{S_E}, s{S_CB}, 3\ns_lshr_b32 s{T1}, s{S_RB}, 2\ns_add_u32 s{S_E}, s{S_E}, s{T1}\ns_and_b32 s{S_R}, s{S_RB}, 3")
    a(f"s_lshl_b32 s{S_CB}, s{S_CB}, 1\ns_add_u32 s{S_CB}, s{S_CB}, s{T0}\ns_and_b32 s{S_RB}, s{S_RB}, 15")
    a(f"s_lshl_b32 s{S_SIG}, s2, 2\ns_add_u32 s{S_SIG}, s{S_SIG}, s{S_W}")
    a(f"s_sub_u32 s{S_P}, 2048, s{S_SIG}\ns_cmp_eq_u32 s{S_SIG}, 0\ns_cselect_b32 s{S_P}, 1024, s{S_P}")
    a("v_and_b32 v2, 7, v0\nv_lshrrev_b32 v3, 3, v0")
    a(f"s_lshl_b32 s{T0}, s{S_RB}, 7\ns_lshl_b32 s{T1}, s{S_W}, 5\ns_add_u32 s{T0}, s{T0}, s{T1}")
    a(f"v_lshl_add_u32 v4, v3, 2, s{T0}")
    a(f"s_lshl_b32 s{T1}, s{S_CB}, 7")
    a(f"v_lshl_add_u32 v5, v2, 4, s{T1}")
    a(f"v_lshl_add_u32 v{V_QOFF}, v4, 11, v5")
    a(f"v_add_u32 v7, 0xffffe800, v{V_QOFF}\nv_add_u32 v8, 0xfffff000, v{V_QOFF}\nv_add_u32 v9, 0xfffff800, v{V_QOFF}")
    a(f"s_lshl_b32 s{T1}, s{S_CB}, 9")
    a(f"v_lshl_add_u32 v10, v2, 6, s{T1}")
    a(f"s_lshl_b32 s{T1}, s{S_CB}, 18")
    a(f"v_lshl_add_u32 v11, v2, 15, s{T1}")
    a("v_lshlrev_b32 v12, 1, v4")
    a(f"v_add_u32 v{V_ZOFF}, v11, v12")
    a(f"v_sub_u32 v{V_XRO}, v11, v12\nv_add_u32 v{V_XRO}, 4088, v{V_XRO}")
    a(f"v_lshl_add_u32 v{V_OOFF}, v4, 12, v5")
    a("v_and_b32 v2, 15, v0\nv_lshrrev_b32 v3, 4, v0")
    a("v_lshlrev_b32 v4, 6, v2\nv_lshl_add_u32 v4, v3, 4, v4")
    a("s_waitcnt lgkmcnt(0)")
    k.stamp("karg")
    k.srd(RA, S_K, 4 << 20); k.srd(RB, S_V, 4 << 20)
    a(f"s_movk_i32 s{T4}, 0x1000")
    for i, vo in enumerate((7, 8, 9)):
        k.vmem(f"buffer_load_dwordx4 {vr(KR+4*i,4)}, v{vo}, {sr(RA,4)}, 0 offen{NT}", "k")
    for t in range(4):
        so = "0" if t < 2 else f"s{T4}"
        k.vmem(f"buffer_load_dwordx4 {vr(KR+12+4*t,4)}, v{V_QOFF}, {sr(RA,4)}, {so} offen offset:{(t&1)*2048}{NT}", "k")
    for t in range(4):
        so = "0" if t < 2 else f"s{T4}"
        k.vmem(f"buffer_load_dwordx4 {vr(VR+4*t,4)}, v{V_QOFF}, {sr(RB,4)}, {so} offen offset:{(t&1)*2048}{NT}", "v")
    k.srd(RC, S_SK, 8192)
    for i in range(4):
        k.vmem(f"buffer_load_dwordx4 {vr(WR+4*i,4)}, v10, {sr(RC,4)}, 0 offen offset:{16*i}", "w")
    k.stamp("i_w")
    a(f"s_lshl_b32 s{S_CH}, s{S_CB}, 6\ns_lshl_b32 s{T1}, s{S_RB}, 2\ns_add_u32 s{S_CH}, s{S_CH}, s{T1}\ns_add_u32 s{S_CH}, s{S_CH}, s{S_W}")
    a(f"s_add_u32 s{C0+2}, s{S_WS}, {WS_FL}\ns_addc_u32 s{C0+3}, s{S_WS+1}, 0")
    a(f"s_load_dword s{S_TAG}, s[{C0+2}:{C0+3}], {FL_EPOCH}")
    a(f"s_lshl_b32 s{T1}, s{S_CH}, 1\ns_and_b32 s{T1}, s{T1}, 0xfffffffc")
    a(f"s_load_dword s{S_DV}, s[{S_D}:{S_D+1}], s{T1}")
    k.srd(RE, S_X, 4 << 20)
    a(f"s_lshl_b32 s{T2}, s{S_SIG}, 11\ns_lshl_b32 s{T3}, s{S_P}, 11")
    for Tt in range(2):
        k.vmem(f"buffer_load_dwordx4 {vr(XS+4*Tt,4)}, v4, {sr(RE,4)}, s{T2} offen offset:{1024*Tt}{NT}", "x")
    for Tt in range(2):
        k.vmem(f"buffer_load_dwordx4 {vr(XP+4*Tt,4)}, v4, {sr(RE,4)}, s{T3} offen offset:{1024*Tt}{NT}", "x")
    k.stamp("i_x")
    k.srd(R_FL, C0+2, 32768)
    a(f"s_lshl_b32 s{T1}, s{S_CB}, 8")
    a(f"v_lshl_add_u32 v{V_FOFF}, v0, 2, s{T1}")
    a(f"s_movk_i32 s{T2}, {FL_F1}")
    k.vmem(f"buffer_load_dword v237, v{V_FOFF}, {sr(R_FL,4)}, s{T2} offen sc1", "fp")
    a(f"s_movk_i32 s{T2}, {FL_F3}")
    k.vmem(f"buffer_load_dword v238, v{V_FOFF}, {sr(R_FL,4)}, s{T2} offen sc1", "fp")
    a(f"s_mul_i32 s{S_LB}, s{S_W}, {CH_LDS}")
    k.srd(RD, S_WS, 4 << 20)
    a(f"s_lshl_b32 s{T1}, s{S_CB}, 18\ns_lshl_b32 s{T2}, s{S_RB}, 8\ns_sub_u32 s{T1}, s{T1}, s{T2}")
    a(f"s_and_b32 s{T2}, s{S_W}, 1\ns_lshl_b32 s{T2}, s{T2}, 7\ns_add_u32 s{T1}, s{T1}, s{T2}\ns_add_u32 s{T1}, s{T1}, 3840")
    a(f"s_lshr_b32 s{T2}, s{S_W}, 1\ns_lshl_b32 s{T2}, s{T2}, 17\ns_add_u32 s{T1}, s{T1}, s{T2}")
    a(f"v_lshl_add_u32 v{V_XPO}, v0, 12, s{T1}")
    a(f"v_cmp_gt_u32 vcc, 32, v0\nv_mov_b32 v9, 0x7ffffff0")
    a(f"v_cndmask_b32 v{V_XPO}, v9, v{V_XPO}, vcc")
    a(f"v_mov_b32 v9, {LDS_CNT}\nv_mov_b32 v10, 0\nds_write_b32 v9, v10")
    a("s_waitcnt lgkmcnt(0)")
    a(f"s_add_u32 s{S_TAG}, s{S_TAG}, 1")
    lb = k.lab("Lnp")
    a(f"s_cmp_lg_u32 s{S_W}, 0\ns_cbranch_scc1 {lb}")
    a(f"s_lshl_b32 s{T0}, s{S_CB}, 7\ns_lshl_b32 s{T1}, s{S_RB}, 3\ns_add_u32 s{T0}, s{T0}, s{T1}\ns_add_u32 s{T0}, s{T0}, {FL_A}")
    a(f"v_mov_b32 v13, s{T0}\nv_mov_b32 v14, s{S_TAG}\nv_mov_b32 v15, s{S_XCC}")
    a("s_mov_b64 exec, 1")
    k.vmem(f"buffer_store_dwordx2 v[14:15], v13, {sr(R_FL,4)}, 0 offen sc1", "pub", optional=True)
    a("s_mov_b64 exec, -1")
    a(f"{lb}:")
    a(f"s_and_b32 s{T0}, s{S_CH}, 1\ns_lshl_b32 s{T1}, s{S_DV}, 16\ns_and_b32 s{S_DV}, s{S_DV}, 0xffff0000\ns_cmp_eq_u32 s{T0}, 0\ns_cselect_b32 s{S_DV}, s{T1}, s{S_DV}")
    a(f"v_add_u32 v5, {R2_S1TAB}, v{V_L16}")
    a(f"s_cmp_eq_u32 s{S_SIG}, 0\ns_cselect_b32 s{T0}, 2, 1\ns_lshl_b32 s{T0}, s{T0}, 10")
    a(f"v_add_u32 v12, s{T0}, v5")
    a(f"s_mul_i32 s{T1}, s{S_W}, {S1_WAVE}\ns_add_u32 s{T1}, s{T1}, {R2}")
    a(f"v_mul_u32_u24 v6, {S1_P}, v2\nv_lshl_add_u32 v6, v3, 4, v6\nv_add_u32 v6, s{T1}, v6")
    a(f"v_bfe_u32 v7, v0, 2, 2\nv_lshl_add_u32 v7, v3, 2, v7\nv_mul_u32_u24 v7, {S1_P}, v7")
    a(f"v_and_b32 v8, 3, v0\nv_lshl_add_u32 v7, v8, 3, v7\nv_add_u32 v7, s{T1}, v7")
    k.stamp("issued")
    k.wait("w")
    k.stamp("kv")
    a(f"s_lshl_b32 s{T0}, s{S_W}, 10")
    for i in range(5):
        a(f"s_add_u32 m0, s{T0}, {R2_S1TAB + 4096*i}")
        a(f"s_add_u32 s{T1}, s{T0}, {4096*i}")
        k.vmem(f"buffer_load_dwordx4 v{V_L16}, {sr(R_TAB,4)}, s{T1} offen lds", "t1")
    KF, WF, VF, KS = 112, 126, 134, 142
    for m in range(4):
        for i in range(7):
            a(f"v_lshlrev_b32 v{KF+2*i}, 16, v{KR+4*i+m}")
            a(f"v_and_b32 v{KF+2*i+1}, 0xffff0000, v{KR+4*i+m}")
        for h in range(2):
            c = 2*m + h
            a(f"v_lshlrev_b32 v{WF+0+h}, 16, v{WR+2*c}")
            a(f"v_and_b32 v{WF+2+h}, 0xffff0000, v{WR+2*c}")
            a(f"v_lshlrev_b32 v{WF+4+h}, 16, v{WR+2*c+1}")
            a(f"v_and_b32 v{WF+6+h}, 0xffff0000, v{WR+2*c+1}")
        for t in range(4):
            a(f"v_lshlrev_b32 v{VF+2*t}, 16, v{VR+4*t+m}")
            a(f"v_and_b32 v{VF+2*t+1}, 0xffff0000, v{VR+4*t+m}")
        for t in range(4):
            a(f"v_pk_mul_f32 {vr(KS+2*t,2)}, {vr(WF+6,2)}, {vr(KF+2*t,2)}")
        for t in range(4):
            a(f"v_pk_fma_f32 {vr(KS+2*t,2)}, {vr(WF+4,2)}, {vr(KF+2*(t+1),2)}, {vr(KS+2*t,2)}")
        for t in range(4):
            a(f"v_pk_fma_f32 {vr(KS+2*t,2)}, {vr(WF+2,2)}, {vr(KF+2*(t+2),2)}, {vr(KS+2*t,2)}")
        for t in range(4):
            a(f"v_pk_fma_f32 {vr(KS+2*t,2)}, {vr(WF+0,2)}, {vr(KF+2*(t+3),2)}, {vr(KS+2*t,2)}")
        for t in range(4):
            a(f"v_pk_mul_f32 {vr(KS+2*t,2)}, {vr(KS+2*t,2)}, {vr(VF+2*t,2)}")
        for h in range(2):
            c = 2*m + h
            a(f"v_cvt_pk_bf16_f32 v{OUT+2*c}, v{KS+6+h}, v{KS+4+h}")
            a(f"v_cvt_pk_bf16_f32 v{OUT+2*c+1}, v{KS+2+h}, v{KS+0+h}")
    k.stamp("p1c")
    def xr_st(sc):
        L = []
        for c in range(8):
            L.append(f"s_mov_b32 s{T1}, {c*4096}")
            L.append(f"buffer_store_dwordx2 {vr(OUT+2*c,2)}, v{V_XRO}, {sr(RD,4)}, s{T1} offen{sc}")
        return L
    for t in xr_st(""):
        if t.startswith("buffer"): k.vmem(t, "xs")
        else: a(t)
    k.stamp("i_xs")
    k.wait("t1")
    a("s_barrier")
    k.stamp("s1go")
    a(f"s_lshl_b32 s{C0}, s{S_CB}, 7\ns_add_u32 s{C0}, s{C0}, {FL_A}")
    a(f"v_and_b32 v13, 15, v0\nv_lshlrev_b32 v13, 3, v13")
    pa_load = f"buffer_load_dwordx2 v[14:15], v13, {sr(R_FL,4)}, s{C0} offen sc1"
    k.vmem(pa_load, "pa")
    k.vmem(f"buffer_load_dword v237, v{V_XPO}, {sr(RD,4)}, 0 offen sc1{NTP}", "xp")
    k.stamp("i_hn")
    B1, AF, TW, TT, GO = 140, 156, 172, 16, 204
    U, W_, F = 92, 100, 108
    B2U, B2W = 140, 156
    for f in range(4):
        a(f"ds_read_b128 {vr(B1+4*f,4)}, v5 offset:{TOFF['S1B1']+1024*f}")
    for Tt in range(2):
        for m in range(4):
            xs, xp = XS+4*Tt+m, XP+4*Tt+m
            f0 = F + 4*(m & 1)
            a(f"v_lshlrev_b32 v{f0}, 16, v{xs}\nv_and_b32 v{f0+1}, 0xffff0000, v{xs}")
            a(f"v_lshlrev_b32 v{f0+2}, 16, v{xp}\nv_and_b32 v{f0+3}, 0xffff0000, v{xp}")
            a(f"v_pk_add_f32 {vr(TT+4*(m&1),2)}, {vr(f0,2)}, {vr(f0+2,2)}")
            a(f"v_pk_add_f32 {vr(TT+4*(m&1)+2,2)}, {vr(f0,2)}, {vr(f0+2,2)} neg_lo:[0,1] neg_hi:[0,1]")
            a(f"v_cvt_pk_bf16_f32 v{U+4*Tt+m}, v{TT+4*(m&1)}, v{TT+4*(m&1)+1}")
            a(f"v_cvt_pk_bf16_f32 v{W_+4*Tt+m}, v{TT+4*(m&1)+2}, v{TT+4*(m&1)+3}")
        a(f"ds_write_b128 v6, {vr(U+4*Tt,4)} offset:{Tt*16*S1_P}")
        a(f"ds_write_b128 v6, {vr(W_+4*Tt,4)} offset:{S1_SEQ+Tt*16*S1_P}")
    a(f"s_lshl_b32 s{T0}, s{S_CH}, 12")
    k.srd(RA, S_H, 4096, add=f"s{T0}")
    a(f"s_add_u32 m0, s{S_LB}, {H_N+64}")
    for m in range(8):
        a(f"ds_read_b128 {vr(TW+4*m,4)}, v5 offset:{TOFF['S1TW']+1024*m}")
        if m & 1: k.vmem(f"buffer_load_dwordx4 v{V_L16}, {sr(RA,4)}, 0 offen offset:{(m>>1)*1024}{NT} lds", "h")
    a("s_waitcnt lgkmcnt(8)")
    for X in range(2):
        for Td in range(2):
            for h in range(2):
                a(f"ds_read_b64_tr_b16 {vr(AF+8*X+4*Td+2*h,2)}, v7 offset:{X*S1_SEQ+h*16*S1_P+32*Td}")
    a("v_mov_b32 v40, 0\nv_mov_b32 v41, 0\nv_mov_b32 v42, 0\nv_mov_b32 v43, 0")
    a(f"v_and_b32 v8, 31, v0\nv_lshl_add_u32 v8, v8, 4, s{S_LB}")
    a("s_waitcnt lgkmcnt(0)")
    k.stamp("s1tr")
    C1 = 76
    def c1(X, Td, Te, c): return C1 + (((X*2+Td)*2+Te)*2+c)*4
    for X in range(2):
        for Td in range(2):
            for Te in range(2):
                for c in range(2):
                    a(f"v_mfma_f32_16x16x32_bf16 {vr(c1(X,Td,Te,c),4)}, {vr(AF+8*X+4*Td,4)}, {vr(B1+8*Te+4*c,4)}, 0")
    for T1_ in range(2):
        for kk in range(2):
            a(f"ds_read_b128 {vr(B2U+8*T1_+4*kk,4)}, v5 offset:{TOFF['S1B2']+4096*T1_+1024*kk}")
    for T1_ in range(2):
        for kk in range(2):
            a(f"ds_read_b128 {vr(B2W+8*T1_+4*kk,4)}, v12 offset:{TOFF['S1B2']+4096*T1_+1024*kk}")
    for m in range(2):
        a(f"ds_write_b128 v8, v[40:43] offset:{m*XSTR+4096}")
    a(f"v_and_b32 v8, 15, v0\nv_lshl_add_u32 v11, v8, 2, s{S_LB}")
    a(f"ds_write_b32 v11, v40 offset:{H_N}")
    def za(X, Te, c): return c1(X, 0, Te, c)
    def twiddle1(X):
        for Te in range(2):
            for Td in range(2):
                cr, ci = c1(X,Td,Te,0), c1(X,Td,Te,1)
                tc, ts = TW + ((Td*2+Te)*2)*4, TW + ((Td*2+Te)*2+1)*4
                t = TT + 8*(Td & 1)
                for o in (0, 2):
                    a(f"v_pk_mul_f32 {vr(t+o,2)}, {vr(cr+o,2)}, {vr(tc+o,2)}")
                    a(f"v_pk_mul_f32 {vr(t+4+o,2)}, {vr(ci+o,2)}, {vr(tc+o,2)}")
                for o in (0, 2):
                    a(f"v_pk_fma_f32 {vr(t+o,2)}, {vr(ci+o,2)}, {vr(ts+o,2)}, {vr(t+o,2)}")
                    a(f"v_pk_fma_f32 {vr(t+4+o,2)}, {vr(cr+o,2)}, {vr(ts+o,2)}, {vr(t+4+o,2)} neg_lo:[1,0,0] neg_hi:[1,0,0]")
                for hh in range(2):
                    a(f"v_cvt_pk_bf16_f32 v{za(X,Te,0)+2*Td+hh}, v{t+2*hh}, v{t+2*hh+1}")
                    a(f"v_cvt_pk_bf16_f32 v{za(X,Te,1)+2*Td+hh}, v{t+4+2*hh}, v{t+4+2*hh+1}")
    twiddle1(0)
    k.stamp("s1tw")
    k.check_or_poll("pa", [pa_load], [f"v_cmp_ne_u32 vcc, s{S_TAG}, v14"])
    a(f"v_cmp_ne_u32 vcc, s{S_XCC}, v15")
    a(f"s_or_b32 s{T0}, vcc_lo, vcc_hi\ns_cmp_eq_u32 s{T0}, 0\ns_cselect_b32 s{S_MODE}, 1, 0")
    if FORCE_GLOBAL: a(f"s_mov_b32 s{S_MODE}, 0")
    a(f"s_lshl_b32 s{T0}, s{S_CB}, 8\ns_lshl_b32 s{T1}, s{S_RB}, 4\ns_add_u32 s{T0}, s{T0}, s{T1}\ns_lshl_b32 s{T1}, s{S_W}, 2\ns_add_u32 s{C0+1}, s{T0}, s{T1}")
    a(f"v_mov_b32 v9, s{C0+1}\nv_mov_b32 v10, s{S_TAG}\ns_movk_i32 s{T2}, {FL_F1}")
    def f1sig(sc):
        L = []
        if sc: L += xr_st(sc) + ["s_waitcnt vmcnt(0)"]
        return L + ["s_mov_b64 exec, 1", f"buffer_store_dword v10, v9, {sr(R_FL,4)}, s{T2} offen{sc}", "s_mov_b64 exec, -1"]
    k.dual(f1sig, "f1")
    k.stamp("mode")
    a(f"s_add_u32 m0, s{S_LB}, {H_S+64}")
    a(f"v_add_u32 v9, 4, v{V_L16}")
    for it in range(4):
        k.vmem(f"buffer_load_dwordx4 v9, {sr(RA,4)}, 0 offen offset:{it*1024} lds", "h")
    a("v_mov_b32 v10, 0")
    k.vmem(f"buffer_load_dword v{V_H01}, v10, {sr(RA,4)}, 0 offen", "h")
    twiddle1(1)
    a("s_waitcnt lgkmcnt(0)")
    C2 = 172
    def c2(X, T1_, Te): return C2 + ((X*2+T1_)*2+Te)*4
    for T1_ in range(2):
        for Te in range(2):
            for X in range(2):
                Bc = B2U if X == 0 else B2W
                a(f"v_mfma_f32_16x16x32_bf16 {vr(c2(X,T1_,Te),4)}, {vr(za(X,Te,0),4)}, {vr(Bc+8*T1_,4)}, 0")
                a(f"v_mfma_f32_16x16x32_bf16 {vr(c2(X,T1_,Te),4)}, {vr(za(X,Te,1),4)}, {vr(Bc+8*T1_+4,4)}, {vr(c2(X,T1_,Te),4)}")
    a(f"v_and_b32 v8, 7, v2\nv_and_b32 v9, 1, v3")
    a(f"s_lshl_b32 s{T0}, s{S_W}, 1\ns_sub_u32 s{T1}, 6, s{T0}")
    a(f"v_or_b32 v10, s{T0}, v9\nv_xor_b32 v10, v10, v8\nv_or_b32 v12, s{T1}, v9\nv_xor_b32 v12, v12, v8")
    a(f"v_lshlrev_b32 v8, 1, v2\nv_lshrrev_b32 v9, 1, v3\nv_add_u32 v8, v8, v9\nv_lshlrev_b32 v8, 7, v8")
    a(f"v_lshl_add_u32 v10, v10, 4, v8\nv_lshl_add_u32 v12, v12, 4, v8")
    a(f"v_add_u32 v10, {GST}, v10\nv_add_u32 v12, {GST+8192}, v12")
    for T1_ in range(2):
        for Te in range(2):
            A_, B_ = c2(0,T1_,Te), c2(1,T1_,Te)
            for o in (0, 2):
                a(f"v_pk_add_f32 {vr(TT+o,2)}, {vr(A_+o,2)}, {vr(B_+o,2)} neg_lo:[0,1] neg_hi:[0,1]")
                a(f"v_pk_add_f32 {vr(TT+4+o,2)}, {vr(A_+o,2)}, {vr(B_+o,2)}")
            for hh in range(2):
                a(f"v_cvt_pk_bf16_f32 v{GO+8*T1_+2*Te+hh}, v{TT+2*hh}, v{TT+2*hh+1}")
                a(f"v_cvt_pk_bf16_f32 v{GO+8*T1_+4+2*Te+hh}, v{TT+4+2*hh}, v{TT+4+2*hh+1}")
        a(f"ds_write_b128 v10, {vr(GO+8*T1_,4)} offset:{4096*T1_}")
        a(f"ds_write_b128 v12, {vr(GO+8*T1_+4,4)} offset:{4096*T1_}")
    a(f"s_movk_i32 s{C0}, {FL_F1}")
    f1_load = f"buffer_load_dword v13, v{V_FOFF}, {sr(R_FL,4)}, s{C0} offen sc1"
    k.vmem(f1_load, "f1l")
    a(f"v_lshrrev_b32 v8, 3, v0\nv_and_b32 v9, 7, v0")
    a(f"v_lshrrev_b32 v10, 1, v8\nv_xor_b32 v10, v10, v9")
    a(f"s_lshr_b32 s{T0}, s{S_W}, 1\ns_lshl_b32 s{T0}, s{T0}, 13\ns_and_b32 s{T1}, s{S_W}, 1\ns_lshl_b32 s{T1}, s{T1}, 12\ns_add_u32 s{T0}, s{T0}, s{T1}\ns_add_u32 s{T0}, s{T0}, {GST}")
    a(f"v_lshlrev_b32 v14, 7, v8\nv_add_u32 v14, s{T0}, v14")
    a(f"v_xor_b32 v12, 4, v10\nv_lshl_add_u32 v10, v10, 4, v14\nv_lshl_add_u32 v12, v12, 4, v14")
    a(f"s_lshl_b32 s{T0}, s2, 7\ns_sub_u32 s{T1}, {2045*32}, s{T0}\ns_cmp_ge_u32 s{S_W}, 2\ns_cselect_b32 s{T0}, s{T1}, s{T0}")
    a(f"s_and_b32 s{T1}, s{S_W}, 1\ns_lshl_b32 s{T1}, s{T1}, 21\ns_add_u32 s{T0}, s{T0}, s{T1}")
    a(f"v_lshlrev_b32 v{V_GOFF}, 16, v8\nv_lshl_add_u32 v{V_GOFF}, v9, 4, v{V_GOFF}\nv_add_u32 v{V_GOFF}, s{T0}, v{V_GOFF}")
    a(f"s_cmp_ge_u32 s{S_W}, 2\ns_cselect_b32 s{T0}, 0, 1\ns_or_b32 s{T0}, s{T0}, s2")
    a(f"s_cmp_eq_u32 s{T0}, 0\ns_cselect_b32 s{T0}, 6, 8")
    a(f"v_cmp_le_u32 vcc, s{T0}, v9")
    a(f"v_add_u32 v14, {(1024-2048)*32 & 0xffffffff}, v{V_GOFF}")
    a(f"v_cndmask_b32 v{V_GOFF}, v{V_GOFF}, v14, vcc")
    a("s_waitcnt lgkmcnt(0)")
    a("s_barrier")
    for i in range(4):
        a(f"ds_read_b128 {vr(GO+4*i,4)}, v{10 if (i&1)==0 else 12} offset:{1024*i}")
    k.stamp("s1")
    a(f"v_and_b32 v6, 1, v0\nv_mul_u32_u24 v6, {XSTR}, v6")
    a("v_bfe_u32 v7, v0, 1, 3\nv_lshlrev_b32 v7, 6, v7\nv_sub_u32 v6, v6, v7")
    a("v_lshrrev_b32 v7, 4, v0\nv_lshl_add_u32 v6, v7, 4, v6")
    a(f"s_add_u32 s{T0}, s{S_LB}, {4032-3584}")
    a(f"v_add_u32 v6, s{T0}, v6")
    a(f"v_and_b32 v8, 15, v0\nv_and_b32 v9, 1, v0\nv_mul_u32_u24 v9, {H_N-H_S+4}, v9")
    a("v_lshl_add_u32 v8, v8, 2, v9\nv_lshl_add_u32 v8, v7, 4, v8")
    a(f"s_add_u32 s{T0}, s{S_LB}, {H_S}")
    a(f"v_add_u32 v8, s{T0}, v8")
    a(f"v_add_u32 v5, s{S_LB}, v{V_L16}")
    k.srd(RC, S_WS, 4 << 20, add=WS_G)
    a("s_waitcnt lgkmcnt(0)")
    for i in range(4):
        a(f"s_mov_b32 s{T2}, {i*8*65536}")
        k.vmem(f"buffer_store_dwordx4 {vr(GO+4*i,4)}, v{V_GOFF}, {sr(RC,4)}, s{T2} offen sc1", "g")
    a(f"s_lshl_b32 s{T0}, s{S_CH}, 12")
    k.srd(RB, S_WS, 4096, add=f"s{T0}")
    a(f"s_cmp_eq_u32 s{S_MODE}, 0\ns_cselect_b32 s{S_ZO}, {4<<20}, 0\ns_add_u32 s{T0}, s{T0}, s{S_ZO}")
    k.srd(RE, S_WS, 4096, add=f"s{T0}")
    k.check_or_poll("f1l", [f1_load], [f"v_cmp_ne_u32 vcc, s{S_TAG}, v13"])
    k.stamp("f1")
    XA, XB = 16, 32
    for it in range(4):
        k.vmem(f"buffer_load_dwordx4 {vr(XA+4*it,4)}, v{V_L16}, {sr(RB,4)}, 0 offen offset:{it*1024} sc1", "xl")
        k.vmem(f"buffer_load_dword v{XB+it}, v{V_L16}, {sr(RB,4)}, 0 offen offset:{it*1024+16} sc1", "xl")
    a(f"v_and_b32 v9, 15, v0\nv_cmp_eq_u32 vcc, 15, v9")
    a(f"v_cndmask_b32 v9, 0, v{V_H01}, vcc")
    a(f"ds_write_b32 v11, v9 offset:{H_S}")
    k.wait("xl")
    k.stamp("xl")
    lb = k.lab("Lf2")
    a(f"v_mov_b32 v9, {LDS_CNT}\nv_mov_b32 v12, 1\nv_mov_b32 v10, s{S_TAG}")
    a("s_mov_b64 exec, 1")
    a("ds_add_rtn_u32 v12, v9, v12")
    a("s_waitcnt lgkmcnt(0)")
    a(f"v_readfirstlane_b32 s{T0}, v12")
    a(f"s_cmp_lg_u32 s{T0}, 3\ns_cbranch_scc1 {lb}")
    a(f"s_lshr_b32 s{T0}, s2, 4\ns_lshl_b32 s{T0}, s{T0}, 7\ns_and_b32 s{T1}, s2, 15\ns_lshl_b32 s{T1}, s{T1}, 2\ns_add_u32 s{T0}, s{T0}, s{T1}\ns_add_u32 s{T0}, s{T0}, {FL_F2}")
    a(f"v_mov_b32 v9, s{T0}")
    k.vmem(f"buffer_store_dword v10, v9, {sr(R_FL,4)}, 0 offen sc1", "f2", optional=True)
    a(f"{lb}:")
    a("s_mov_b64 exec, -1")
    for it in range(4):
        a(f"ds_write_b128 v5, {vr(XA+4*it,4)} offset:{XSTR+it*1024}")
        for i in range(4):
            hi = XA+4*it+i+1 if i < 3 else XB+it
            a(f"v_alignbit_b32 v{44+4*(it&1)+i}, v{hi}, v{XA+4*it+i}, 16")
        a(f"ds_write_b128 v5, {vr(44+4*(it&1),4)} offset:{it*1024}")
    ACC = 16
    SET = [48, 112]
    def xf(s, u): return SET[s] + 4*u
    def hf(s, J): return SET[s] + 32 + 4*J
    def reads(s, jj):
        L = []
        for u in range(8):
            L.append(f"ds_read_b64 {vr(hf(s,u),2)}, v8 offset:{512*u+64*jj}")
            L.append(f"ds_read_b64 {vr(hf(s,u)+2,2)}, v8 offset:{512*u+64*jj+8}")
            L.append(f"ds_read_b128 {vr(xf(s,u),4)}, v6 offset:{512*(7-u)+64*jj}")
        return L
    def mfmas(s, first):
        L = []; seen = set()
        for J in range(8):
            for u in range(8 - J):
                c = u + J
                cin = vr(ACC+4*c,4) if not (first and c not in seen) else "0"
                seen.add(c)
                L.append(f"v_mfma_f32_16x16x32_bf16 {vr(ACC+4*c,4)}, {vr(xf(s,u),4)}, {vr(hf(s,J),4)}, {cin}")
        return L
    a("s_waitcnt lgkmcnt(0)")
    for r in reads(0, 0): a(r)
    k.stamp("preloop")
    f2_addr = [f"v_lshrrev_b32 v9, 2, v0", f"v_lshlrev_b32 v9, 7, v9", f"v_and_b32 v10, 3, v0", f"v_lshl_add_u32 v11, v10, 4, v9"]
    f2_load = f"buffer_load_dwordx4 v[176:179], v11, {sr(R_FL,4)}, s{C0} offen sc1"
    f2_cmp = [f"v_xor_b32 v{176+i}, s{S_TAG}, v{176+i}" for i in range(4)] + ["v_or3_b32 v176, v176, v177, v178", "v_or_b32 v176, v176, v179", "v_cmp_ne_u32 vcc, 0, v176"]
    for jj in range(8):
        s = jj & 1
        a("s_waitcnt lgkmcnt(0)")
        k.stamp(f"jj{jj}")
        if jj == JJ_F2:
            k.wait("f2l")
            for t in f2_cmp: a(t)
            a(f"s_or_b32 s{S_GD}, vcc_lo, vcc_hi")
            k.stamp("f2")
            a(f"s_lshl_b32 s{T0}, s{S_E}, 16\ns_add_u32 s{T0}, s{T0}, {WS_G}")
            k.srd(RB, S_WS, 65536, add=f"s{T0}")
            a(f"s_cmp_eq_u32 s{S_GD}, 0\ns_cselect_b32 s{RB+2}, 65536, 0")
            a(f"s_mul_i32 s{T0}, s{S_W}, {16*S2_PIECE}\ns_add_u32 s{T0}, s{T0}, {R2}\ns_lshl_b32 s{T1}, s{S_W}, 14")
        R = reads(1 - s, jj + 1) if jj < 7 else []
        M = mfmas(s, jj == 0)
        extra = []
        if jj == 0:
            extra.append([f"s_movk_i32 s{T4}, 0x1000"] + k.srd_lines(RA, S_Q, 4 << 20))
            for t in range(4):
                so = "0" if t < 2 else f"s{T4}"
                extra.append([("q", f"buffer_load_dwordx4 {vr(V_Q+4*t,4)}, v{V_QOFF}, {sr(RA,4)}, {so} offen offset:{(t&1)*2048}{NT}")])
        if jj == 1:
            extra.append([f"s_lshl_b32 s{T0}, s{S_W}, 10", f"s_lshl_b32 s{T1}, s{S_R}, 12", f"s_add_u32 s{T1}, s{T1}, s{T0}"])
            for i, (off, rdep) in enumerate(((TOFF['S2A1'], True), (TOFF['S2TW'], True), (TOFF['S2B2'], False))):
                extra.append([f"s_add_u32 m0, s{T0}, {R3 + 4096*i}", f"s_add_u32 s{T2}, s{T1 if rdep else T0}, {off}",
                              ("t2", f"buffer_load_dwordx4 v{V_L16}, {sr(R_TAB,4)}, s{T2} offen lds")])
        if jj == JJ_F2LD:
            extra.append(f2_addr + [f"s_movk_i32 s{C0}, {FL_F2}", ("f2l", f2_load)])
        if jj == JJ_F2:
            for i in range(16):
                extra.append([f"s_add_u32 m0, s{T0}, {i*S2_PIECE}", f"s_add_u32 s{T2}, s{T1}, {i*1024}",
                              ("gd", f"buffer_load_dwordx4 v{V_L16}, {sr(RB,4)}, s{T2} offen sc1 lds")])
        if jj == 5 and WBL2:
            lbw = k.lab("Lwb")
            extra.append([f"s_lshr_b32 s{T2}, s2, 3", f"s_or_b32 s{T2}, s{T2}, s{S_W}", f"s_cmp_lg_u32 s{T2}, 0", f"s_cbranch_scc1 {lbw}", ("wb", "buffer_wbl2 sc1", True), f"{lbw}:"])
        ri = 0; ei = 0
        for m in M:
            a(m)
            if ri < len(R): a(R[ri]); ri += 1
            if ei < len(extra) and (ri >= 8 or not R):
                for t in extra[ei]:
                    if isinstance(t, tuple): k.vmem(t[1], t[0], optional=(len(t) > 2))
                    else: a(t)
                ei += 1
        assert ei == len(extra)
    k.stamp("loop")
    a("v_and_b32 v2, 15, v0\nv_lshrrev_b32 v3, 4, v0")
    a("v_lshlrev_b32 v4, 2, v2\nv_lshl_add_u32 v4, v3, 7, v4")
    a(f"s_add_u32 s{T0}, s{S_LB}, {XSTR+4092-64-3584}")
    a(f"v_sub_u32 v5, s{T0}, v4")
    KV = 48
    for c in range(8):
        a(f"ds_read_b32 v{KV+2*c}, v5 offset:{3584-512*c+64}")
        a(f"ds_read_b32 v{KV+2*c+1}, v5 offset:{3584-512*c}")
    TM = 64; ZS = 80
    for c in range(8):
        if c in (0, 4): a(f"s_waitcnt lgkmcnt({8 if c == 0 else 0})")
        R0, R1 = KV+2*c, KV+2*c+1
        t = TM + 4*(c & 1)
        a(f"v_and_b32 v{t}, 0xffff0000, v{R0}")
        a(f"v_lshlrev_b32 v{t+1}, 16, v{R0}")
        a(f"v_and_b32 v{t+2}, 0xffff0000, v{R1}")
        a(f"v_lshlrev_b32 v{t+3}, 16, v{R1}")
        for j in range(4):
            a(f"v_fmac_f32 v{ACC+4*c+j}, s{S_DV}, v{t+j}")
        a(f"v_cvt_pk_bf16_f32 v{ZS+2*c}, v{ACC+4*c}, v{ACC+4*c+1}")
        a(f"v_cvt_pk_bf16_f32 v{ZS+2*c+1}, v{ACC+4*c+2}, v{ACC+4*c+3}")
    def zt_st(sc):
        L = []
        for c in range(8):
            L.append(f"buffer_store_dword v{ZS+2*c}, v4, {sr(RE,4)}, 0 offen offset:{512*c}{sc}")
            L.append(f"buffer_store_dword v{ZS+2*c+1}, v4, {sr(RE,4)}, 0 offen offset:{512*c+64}{sc}")
        return L
    k.dual(zt_st, "zs")
    k.stamp("zst")
    lg, lj = k.lab("Lgl"), k.lab("Lgj")
    a(f"s_cmp_lg_u32 s{S_GD}, 0\ns_cbranch_scc1 {lg}")
    a(f"{lj}:")
    t = k.tail
    t(f"{lg}:")
    for x in f2_addr + [f"s_movk_i32 s{C0}, {FL_F2}"] + k.poll_lines([f2_load], f2_cmp, sleep=8): t(x)
    t(f"s_mov_b32 s{RB+2}, 65536")
    t(f"s_mul_i32 s{T0}, s{S_W}, {16*S2_PIECE}\ns_add_u32 s{T0}, s{T0}, {R2}\ns_lshl_b32 s{T1}, s{S_W}, 14")
    for i in range(16):
        t(f"s_add_u32 m0, s{T0}, {i*S2_PIECE}\ns_add_u32 s{T2}, s{T1}, {i*1024}\nbuffer_load_dwordx4 v{V_L16}, {sr(RB,4)}, s{T2} offen sc1 lds")
    t(f"s_waitcnt vmcnt(0)\ns_branch {lj}")
    A1, TW2, B2 = 16, 32, 96
    a(f"v_add_u32 v5, {R3}, v{V_L16}")
    a("v_bfe_u32 v7, v0, 2, 2\nv_lshl_add_u32 v7, v3, 2, v7")
    a(f"v_mul_u32_u24 v7, {S2_PIECE}, v7")
    a("v_and_b32 v8, 3, v0\nv_lshl_add_u32 v7, v8, 3, v7")
    a(f"s_lshl_b32 s{T3}, s{S_W}, 8\ns_add_u32 s{T0}, s{T3}, {R2}")
    a(f"v_add_u32 v7, s{T0}, v7")
    a(f"s_lshl_b32 s{T0}, s{S_W}, 10\ns_add_u32 s{T0}, s{T0}, {R3+4096}")
    a(f"v_lshl_add_u32 v6, v3, 4, s{T0}")
    a("v_lshlrev_b32 v9, 13, v3\nv_lshl_add_u32 v9, v2, 4, v9")
    a(f"s_add_u32 s{T0}, s{T3}, {ZBUF}")
    a(f"v_add_u32 v9, s{T0}, v9")
    k.wait("gd")
    a("s_barrier")
    k.stamp("s2go")
    P2R, ACC2, BF, t0r, t1r, ur = 96, 128, 192, 216, 220, 228
    lq = []
    def ld(text, tag): a(text); lq.append(tag)
    def lwait(tag):
        idx = max(i for i, t in enumerate(lq) if t == tag)
        a(f"s_waitcnt lgkmcnt({min(15, len(lq) - 1 - idx)})")
    def acc(i, c): return ACC2 + (i*2+c)*4
    def rd(i):
        b = BF + 8*(i % 3)
        for ks in range(2):
            for h in range(2):
                ld(f"ds_read_b64_tr_b16 {vr(b+4*ks+2*h,2)}, v7 offset:{(32*ks+16*h)*S2_PIECE+i*32}", f"rd{i}")
    def tw_rd(i):
        for m in (2*i, 2*i+1): ld(f"ds_read_b128 {vr(TW2+4*m,4)}, v6 offset:{64*m}", f"tw{i}")
    def mf(i):
        b = BF + 8*(i % 3)
        for c in range(2):
            a(f"v_mfma_f32_16x16x32_bf16 {vr(acc(i,c),4)}, {vr(A1+4*c,4)}, {vr(b,4)}, 0")
        for c in range(2):
            a(f"v_mfma_f32_16x16x32_bf16 {vr(acc(i,c),4)}, {vr(A1+8+4*c,4)}, {vr(b+4,4)}, {vr(acc(i,c),4)}")
    def twid(i):
        cr, ci = acc(i,0), acc(i,1)
        tc, ts = TW2 + 8*i, TW2 + 8*i + 4
        t = t0r if (i & 1) == 0 else t1r
        for o in (0, 2):
            a(f"v_pk_mul_f32 {vr(t+o,2)}, {vr(cr+o,2)}, {vr(tc+o,2)}")
            a(f"v_pk_mul_f32 {vr(ur+o,2)}, {vr(ci+o,2)}, {vr(tc+o,2)}")
        for o in (0, 2):
            a(f"v_pk_fma_f32 {vr(t+o,2)}, {vr(ci+o,2)}, {vr(ts+o,2)}, {vr(t+o,2)}")
            a(f"v_pk_fma_f32 {vr(cr+o,2)}, {vr(cr+o,2)}, {vr(ts+o,2)}, {vr(ur+o,2)} neg_lo:[1,0,0] neg_hi:[1,0,0]")
    def pack(ip):
        for j in range(4):
            a(f"v_cvt_pk_bf16_f32 v{P2R+(j*2+0)*4+ip}, v{t0r+j}, v{t1r+j}")
            a(f"v_cvt_pk_bf16_f32 v{P2R+(j*2+1)*4+ip}, v{acc(2*ip,0)+j}, v{acc(2*ip+1,0)+j}")
    for f in range(4): ld(f"ds_read_b128 {vr(A1+4*f,4)}, v5 offset:{1024*f}", "a1")
    rd(0); rd(1); tw_rd(0); tw_rd(1)
    for i in range(8):
        lwait(f"rd{i}")
        mf(i)
        if i + 2 < 8: rd(i + 2)
        if i + 2 < 8: tw_rd(i + 2)
        if i >= 2:
            lwait(f"tw{i-2}")
            twid(i - 2)
            if (i - 2) & 1: pack((i - 2) >> 1)
    for f in range(4): ld(f"ds_read_b128 {vr(A1+4*f,4)}, v5 offset:{8192+1024*f}", "b2")
    B2 = A1
    lwait("tw7")
    twid(6); twid(7); pack(3)
    for j in range(4):
        for c in range(2):
            a(f"ds_write_b128 v9, {vr(P2R+(j*2+c)*4,4)} offset:{j*2048+c*1024}")
    k.wait("zs")
    a(f"v_mov_b32 v10, s{C0+1}\nv_mov_b32 v11, s{S_TAG}\ns_movk_i32 s{T2}, {FL_F3}")
    k.dual(lambda sc: ["s_mov_b64 exec, 1", f"buffer_store_dword v11, v10, {sr(R_FL,4)}, s{T2} offen{sc}", "s_mov_b64 exec, -1"], "f3")
    a(f"s_lshl_b32 s{T0}, s{S_W}, 13\ns_add_u32 s{T0}, s{T0}, {ZBUF}")
    a(f"v_add_u32 v10, s{T0}, v{V_L16}")
    a("v_lshlrev_b32 v11, 18, v2\nv_lshl_add_u32 v11, v3, 3, v11")
    a(f"s_lshl_b32 s{T0}, s{S_R}, 4\ns_lshl_b32 s{T1}, s{S_W}, 2\ns_add_u32 s{T0}, s{T0}, s{T1}\ns_lshl_b32 s{T0}, s{T0}, 12")
    a(f"s_lshl_b32 s{T1}, s{S_E}, 5\ns_add_u32 s{T0}, s{T0}, s{T1}\ns_add_u32 s{T3}, s{T0}, 2048")
    k.srd(RC, S_OUT, 8 << 20)
    k.srd(RB, S_WS, 4 << 20, add=f"s{S_ZO}")
    a("s_waitcnt lgkmcnt(0)")
    a("s_barrier")
    k.stamp("s2b")
    ZF = 32
    for jj in range(4):
        for c in range(2):
            a(f"ds_read_b128 {vr(ZF+(jj*2+c)*4,4)}, v10 offset:{jj*2048+c*1024}")
    a(f"s_movk_i32 s{C0}, {FL_F3}")
    f3_load = f"buffer_load_dword v12, v{V_FOFF}, {sr(R_FL,4)}, s{C0} offen sc1"
    k.vmem(f3_load, "f3l")
    C2b = 64
    for jj in range(4):
        a(f"s_waitcnt lgkmcnt({6-2*jj})")
        for T1_ in range(2):
            d = C2b + (jj*2+T1_)*4
            a(f"v_mfma_f32_16x16x32_bf16 {vr(d,4)}, {vr(ZF+(jj*2)*4,4)}, {vr(B2+8*T1_,4)}, 0")
            a(f"v_mfma_f32_16x16x32_bf16 {vr(d,4)}, {vr(ZF+(jj*2+1)*4,4)}, {vr(B2+8*T1_+4,4)}, {vr(d,4)}")
    k.check_or_poll("f3l", [f3_load], [f"v_cmp_ne_u32 vcc, s{S_TAG}, v12"])
    ZR = 112
    for c in range(8):
        a(f"s_mov_b32 s{T1}, {c*4096}")
        k.vmem(f"buffer_load_dwordx2 {vr(ZR+2*c,2)}, v{V_ZOFF}, {sr(RB,4)}, s{T1} offen sc1", "zl")
    O = 96
    for jj in range(4):
        for T1_ in range(2):
            d = C2b + (jj*2+T1_)*4; o = O + 2*(jj*2+T1_)
            a(f"v_cvt_pk_bf16_f32 v{o}, v{d}, v{d+1}")
            a(f"v_cvt_pk_bf16_f32 v{o+1}, v{d+2}, v{d+3}")
    k.stamp("o2")
    k.wait("zl")
    k.stamp("zl")
    QF0, OUT3 = 128, 144
    for t in range(4):
        for m in range(4):
            zf = QF0 + 4*(m & 1); qf = zf + 2
            for h in range(2):
                c = 2*m + h
                src = ZR + 2*c + (t >> 1)
                if t & 1: a(f"v_and_b32 v{zf+h}, 0xffff0000, v{src}")
                else:     a(f"v_lshlrev_b32 v{zf+h}, 16, v{src}")
            a(f"v_lshlrev_b32 v{qf}, 16, v{V_Q+4*t+m}")
            a(f"v_and_b32 v{qf+1}, 0xffff0000, v{V_Q+4*t+m}")
            a(f"v_pk_mul_f32 {vr(qf,2)}, {vr(qf,2)}, {vr(zf,2)}")
            a(f"v_cvt_pk_bf16_f32 v{OUT3+4*t+m}, v{qf}, v{qf+1}")
        a(f"s_mov_b32 s{T1}, {t*4096}")
        k.vmem(f"buffer_store_dwordx4 {vr(OUT3+4*t,4)}, v{V_OOFF}, {sr(RC,4)}, s{T1} offen{O3SC}", "o3")
    k.stamp("p3")
    for jj in range(4):
        for T1_ in range(2):
            o = O + 2*(jj*2+T1_)
            a(f"s_add_u32 s{T1}, s{T3}, {jj*4096 + T1_*(16*64*4096)}")
            k.vmem(f"buffer_store_dwordx2 {vr(o,2)}, v11, {sr(RC,4)}, s{T1} offen{O2SC}", "o2")
    lb = k.lab("Lne")
    a(f"s_or_b32 s{T0}, s2, s{S_W}\ns_cmp_lg_u32 s{T0}, 0\ns_cbranch_scc1 {lb}")
    a(f"v_mov_b32 v8, {FL_EPOCH}\nv_mov_b32 v9, s{S_TAG}")
    a("s_mov_b64 exec, 1")
    a(f"buffer_store_dword v9, v8, {sr(R_FL,4)}, 0 offen")
    a("s_mov_b64 exec, -1")
    a(f"{lb}:")
    if PROF:
        k.stamp("fin0")
        a("s_waitcnt vmcnt(0)")
        k.stamp("fin")
        a(f"s_memrealtime s[76:77]")
        a("s_waitcnt lgkmcnt(0)")
        a(f"s_add_u32 s{C0}, s{S_WS}, {64<<20}\ns_addc_u32 s{C0+1}, s{S_WS+1}, 0")
        a(f"s_lshl_b32 s{T0}, s{S_SIG}, 6\nv_mov_b32 v0, s{T0}")
        a("s_mov_b64 exec, 1")
        for i in range(k.nstamp):
            a(f"s_sub_u32 s{T1}, s{ST0+2*i}, s{ST0}\nv_mov_b32 v4, s{T1}\nglobal_store_dword v0, v4, s[{C0}:{C0+1}] offset:{4*i}\ns_nop 1")
        a(f"v_mov_b32 v4, s78\nglobal_store_dword v0, v4, s[{C0}:{C0+1}] offset:48\ns_nop 1")
        a(f"v_mov_b32 v4, s76\nglobal_store_dword v0, v4, s[{C0}:{C0+1}] offset:52\ns_nop 1")
        a(f"v_mov_b32 v4, {k.nstamp}\nglobal_store_dword v0, v4, s[{C0}:{C0+1}] offset:56\ns_nop 1")
        a(f"s_lshl_b32 s{T1}, s{S_GD}, 1\ns_or_b32 s{T1}, s{T1}, s{S_MODE}\ns_min_u32 s{T1}, s{T1}, 3")
        a(f"v_mov_b32 v4, s{T1}\nglobal_store_dword v0, v4, s[{C0}:{C0+1}] offset:60")
        if E("DBGOUT"):
            lbd = k.lab("Ldbg")
            a(f"s_load_dwordx2 s[{C0+2}:{C0+3}], s[0:1], 96\ns_waitcnt lgkmcnt(0)")
            a(f"s_lshl_b32 s{T0}, s{S_SIG}, 0\ns_cmp_lg_u32 s{S_SIG}, {int(E('DBGOUT'))}\ns_cbranch_scc1 {lbd}")
            a("v_mov_b32 v0, 0")
            for i in range(k.nstamp):
                a(f"s_sub_u32 s{T1}, s{ST0+2*i}, s{ST0}\nv_mov_b32 v4, s{T1}\nglobal_store_dword v0, v4, s[{C0+2}:{C0+3}] offset:{4*i}\ns_nop 1")
            a(f"s_sub_u32 s{T1}, s76, s78\nv_mov_b32 v4, s{T1}\nglobal_store_dword v0, v4, s[{C0+2}:{C0+3}] offset:60")
            a(f"{lbd}:")
        print("stamps:", k.names)
    a("s_endpgm")
    return k.a.lines + k.tail.lines + ["L_end:", "s_endpgm"]

def main(out_path):
    lines = fix_hazards(build())
    hdr = open(os.path.join(os.path.dirname(__file__), "header.txt")).read().rstrip("\n").split("\n")
    L = list(hdr)
    L.append(f"; @launch grid=(256,1,1) block=(256,1,1) lds={LDS_BYTES}")
    L += ['.amdgcn_target "amdgcn-amd-amdhsa--gfx950"', ".text", f".globl {KNAME}", ".p2align 8", f".type {KNAME},@function", f"{KNAME}:"]
    L += lines
    L += ["L_code_end:", ".p2align 8", ".type L_tables,@object", "L_tables:"] + TAB_LINES + [".size L_tables, .-L_tables"]
    L += ['.section .rodata,"a"', ".p2align 6", f".amdhsa_kernel {KNAME}", "  .amdhsa_next_free_vgpr 256", "  .amdhsa_next_free_sgpr 102",
          "  .amdhsa_accum_offset 256", "  .amdhsa_group_segment_fixed_size 0", "  .amdhsa_kernarg_size 112",
          "  .amdhsa_user_sgpr_count 2", "  .amdhsa_user_sgpr_kernarg_segment_ptr 1", "  .amdhsa_system_sgpr_workgroup_id_x 1",
          "  .amdhsa_float_denorm_mode_32 3", ".end_amdhsa_kernel"]
    open(out_path, "w").write("\n".join(L) + "\n")

if __name__ == "__main__":
    main(sys.argv[1] if len(sys.argv) > 1 else f"cdna_kernels/{NAME}.s")
```

```python
import sys, os
sys.path.insert(0, os.path.dirname(__file__))
from asmlib import *
import tables

NAME = "concat_heads__ssm_conv_h3__spectral_fnet__prompt"
KNAME = NAME + "_kernel"
WS_XR, WS_ZT, WS_G, WS_FL = 0, 0, 8 << 20, 12 << 20
FL_EPOCH, FL_A, FL_F1, FL_F3, FL_F2 = 0, 4096, 8192, 12288, 16384
SRD3 = "0x20000"
E = os.environ.get
PROF = E("PROF") == "1"
NT = " nt" if E("NT", "1") == "1" else ""
NTP = " nt" if E("NTP", "1") == "1" else ""
STAMPS = set(E("STAMPS", "entry,s1go,s1,kv,p1c,f1,preloop,loop,s2go,o2,fin").split(","))
FORCE_GLOBAL = E("FORCE_GLOBAL") == "1"
JJ_SIG = int(E("JJ_SIG", 2)); JJ_F2LD = int(E("JJ_F2LD", 6)); JJ_F2 = int(E("JJ_F2", 7))
O3SC = E("O3SC", " sc1"); O2SC = E("O2SC", ""); WBL2 = int(E("WBL2", 0)); TAILORD = int(E("TAILORD", 0)); EARLY = int(E("EARLY", 0)); F2SLEEP = int(E("F2SLEEP", 2))

T = tables.build(four=True)
TAB_ORDER = ['S1B1', 'S1TW', 'S1B2', 'S2A1', 'S2TW', 'S2B2']
TAB_LINES, TOFF, TAB_BYTES = tables.emit_tables(T, TAB_ORDER)

XSTR = 4640
H_S = 2 * XSTR
H_N = H_S + 4224
CH_LDS = H_N + 4160
R2 = 4 * CH_LDS
S1_P = 96; S1_SEQ = 32 * S1_P; S1_WAVE = 2 * S1_SEQ
R2_S1TAB = R2 + 4 * S1_WAVE
GST = R2 + 45056
S2_PIECE = 1056
R3 = R2 + 64 * S2_PIECE
LDS_CNT = R3 + 12288
LDS_BYTES = LDS_CNT + 64
ZBUF = 0

S_Q, S_K, S_V, S_SK, S_H, S_D, S_X = 4, 6, 8, 10, 12, 14, 16
S_TABP = 18
S_OUT, S_WS = 20, 22
S_CB, S_RB, S_W, S_TAG, S_MODE, S_CH = 24, 25, 26, 27, 28, 29
S_XCC, S_SIG, S_P, S_LB, S_DV, S_E, S_R = 30, 31, 32, 33, 34, 35, 3
RA, RB, RC, RD, RE, R_FL, R_TAB = 36, 40, 44, 48, 52, 56, 60
T0, T1, T2, T3, T4, S_GD = 64, 65, 66, 67, 68, 69
C0 = 70
S_ZO = 75
S_DBG = 76
S_LAST = 74
ST0 = 80
V_Q = 240
V_ZOFF, V_OOFF, V_QOFF, V_FOFF, V_L16 = 232, 233, 234, 235, 236
V_DUM = 228
V_GOFF, V_XRO, V_XPO, V_H01 = 224, 225, 226, 227
V_TP = 239

class K:
    def __init__(self):
        self.a = Asm(); self.tail = Asm()
        self.vm = []; self.nlab = 0; self.nstamp = 0; self.names = []
    def lab(self, p="L"):
        self.nlab += 1; return f"{p}_{self.nlab}"
    def vmem(self, text, tag, optional=False):
        self.a(text); self.vm.append((tag, optional))
    def count_after(self, tag):
        idx = max(i for i, (t, o) in enumerate(self.vm) if t == tag)
        n = sum(1 for (t, o) in self.vm[idx+1:] if not o)
        assert n <= 63, n
        return n
    def wait(self, tag, lgkm=None):
        self.a(f"s_waitcnt vmcnt({self.count_after(tag)})" + (f" lgkmcnt({lgkm})" if lgkm is not None else ""))
    def srd_lines(self, d, base, nbytes, add=None):
        if add is None: L = [f"s_mov_b32 s{d}, s{base}", f"s_mov_b32 s{d+1}, s{base+1}"]
        else: L = [f"s_add_u32 s{d}, s{base}, {add}", f"s_addc_u32 s{d+1}, s{base+1}, 0"]
        return L + [f"s_mov_b32 s{d+2}, {nbytes}", f"s_mov_b32 s{d+3}, {SRD3}"]
    def srd(self, d, base, nbytes, add=None):
        for t in self.srd_lines(d, base, nbytes, add): self.a(t)
    def stamp(self, name=""):
        if PROF and name in STAMPS:
            self.names.append(name)
            assert self.nstamp < 11
            self.a(f"s_memtime s[{ST0+2*self.nstamp}:{ST0+2*self.nstamp+1}]")
            self.nstamp += 1
    def dual(self, fn, tag):
        lg, lj = self.lab("Lg"), self.lab("Lj")
        a = self.a
        a(f"s_cmp_eq_u32 s{S_MODE}, 0")
        a(f"s_cbranch_scc1 {lg}")
        for t in fn(""):
            if t.startswith(("buffer_", "global_")): self.vmem(t, tag)
            else: a(t)
        a(f"{lj}:")
        self.tail(f"{lg}:")
        for t in fn(" sc1"): self.tail(t)
        self.tail(f"s_branch {lj}")
    def poll_lines(self, loads, cmps, sleep=1):
        lp, ok = self.lab("Lp"), self.lab("Lok")
        L = [f"s_mov_b32 s{T4}, 0x100000", f"{lp}:"] + loads + ["s_waitcnt vmcnt(0)"] + cmps
        L += [f"s_cbranch_vccz {ok}", f"s_sleep {sleep}", f"s_sub_u32 s{T4}, s{T4}, 1", f"s_cmp_lg_u32 s{T4}, 0", f"s_cbranch_scc1 {lp}", f"{ok}:"]
        return L
    def poll(self, loads, cmps, sleep=1):
        for t in self.poll_lines(loads, cmps, sleep): self.a(t)
    def check_or_poll(self, tag, loads, cmps, sleep=1):
        lg, lj = self.lab("Lr"), self.lab("Lrj")
        self.wait(tag)
        for t in cmps: self.a(t)
        self.a(f"s_cbranch_vccnz {lg}")
        self.a(f"{lj}:")
        self.tail(f"{lg}:")
        for t in self.poll_lines(loads, cmps, sleep): self.tail(t)
        self.tail(f"s_branch {lj}")

def build():
    k = K(); a = k.a
    KR, VR, WR = 16, 44, 60
    XS, XP = 76, 84
    OUT = V_Q
    a("s_cmp_ge_u32 s2, 256")
    a("s_cbranch_scc1 L_end")
    if PROF: a(f"s_memrealtime s[78:79]")
    k.stamp("entry")
    a("s_load_dwordx16 s[4:19], s[0:1], 0")
    a("s_load_dwordx2 s[20:21], s[0:1], 88")
    a("s_load_dwordx2 s[22:23], s[0:1], 104")
    a("v_lshrrev_b32 v1, 6, v0\nv_and_b32 v0, 63, v0")
    a(f"s_getpc_b64 s[{C0}:{C0+1}]")
    a("L_pc0:")
    a(f"v_readfirstlane_b32 s{S_W}, v1")
    a(f"v_lshlrev_b32 v{V_L16}, 4, v0")
    a(f"s_lshr_b32 s{T1}, s2, 3\ns_lshl_b32 s{T1}, s{T1}, 2\ns_add_u32 s{T1}, s{T1}, s{S_W}\ns_and_b32 s{T1}, s{T1}, 31\ns_lshl_b32 s{T1}, s{T1}, 10")
    a(f"s_min_u32 s{T1}, s{T1}, L_code_end-L_pc0-1024")
    a(f"s_add_u32 s{C0}, s{C0}, s{T1}\ns_addc_u32 s{C0+1}, s{C0+1}, 0")
    k.vmem(f"global_load_dwordx4 {vr(V_DUM,4)}, v{V_L16}, s[{C0}:{C0+1}]", "cp")
    a(f"s_getpc_b64 s[{C0+4}:{C0+5}]")
    a(f"s_add_u32 s{C0+4}, s{C0+4}, L_tables-.\ns_addc_u32 s{C0+5}, s{C0+5}, 0")
    k.srd(R_TAB, C0+4, TAB_BYTES)
    a(f"s_getreg_b32 s{S_XCC}, hwreg(HW_REG_XCC_ID, 0, 4)")
    a(f"s_and_b32 s{S_CB}, s2, 7\ns_lshr_b32 s{S_RB}, s2, 3\ns_lshr_b32 s{T0}, s{S_RB}, 4")
    a(f"s_lshl_b32 s{S_E}, s{S_CB}, 3\ns_lshr_b32 s{T1}, s{S_RB}, 2\ns_add_u32 s{S_E}, s{S_E}, s{T1}\ns_and_b32 s{S_R}, s{S_RB}, 3")
    a(f"s_lshl_b32 s{S_CB}, s{S_CB}, 1\ns_add_u32 s{S_CB}, s{S_CB}, s{T0}\ns_and_b32 s{S_RB}, s{S_RB}, 15")
    a(f"s_lshl_b32 s{S_SIG}, s2, 2\ns_add_u32 s{S_SIG}, s{S_SIG}, s{S_W}")
    a(f"s_sub_u32 s{S_P}, 2048, s{S_SIG}\ns_cmp_eq_u32 s{S_SIG}, 0\ns_cselect_b32 s{S_P}, 1024, s{S_P}")
    a("v_and_b32 v2, 7, v0\nv_lshrrev_b32 v3, 3, v0")
    a(f"s_lshl_b32 s{T0}, s{S_RB}, 7\ns_lshl_b32 s{T1}, s{S_W}, 5\ns_add_u32 s{T0}, s{T0}, s{T1}")
    a(f"v_lshl_add_u32 v4, v3, 2, s{T0}")
    a(f"s_lshl_b32 s{T1}, s{S_CB}, 7")
    a(f"v_lshl_add_u32 v5, v2, 4, s{T1}")
    a(f"v_lshl_add_u32 v{V_QOFF}, v4, 11, v5")
    a(f"v_add_u32 v7, 0xffffe800, v{V_QOFF}\nv_add_u32 v8, 0xfffff000, v{V_QOFF}\nv_add_u32 v9, 0xfffff800, v{V_QOFF}")
    a(f"s_lshl_b32 s{T1}, s{S_CB}, 18")
    a(f"v_lshl_add_u32 v11, v3, 15, s{T1}")
    a(f"v_lshl_add_u32 v12, v2, 2, s{T0}\nv_lshlrev_b32 v12, 1, v12")
    a(f"v_add_u32 v{V_ZOFF}, v11, v12")
    a(f"v_sub_u32 v{V_XRO}, v11, v12\nv_add_u32 v{V_XRO}, 4088, v{V_XRO}")
    a(f"v_lshlrev_b32 v{V_TP}, 5, v2\nv_lshl_or_b32 v{V_TP}, v3, 2, v{V_TP}")
    a(f"v_lshl_add_u32 v{V_OOFF}, v4, 12, v5")
    a("v_and_b32 v2, 15, v0\nv_lshrrev_b32 v3, 4, v0")
    a("s_waitcnt lgkmcnt(0)")
    k.stamp("karg")
    k.srd(RC, S_SK, 8192)
    a(f"v_lshlrev_b32 v10, 3, v0\ns_lshl_b32 s{T1}, s{S_CB}, 9")
    k.vmem(f"buffer_load_dwordx2 v[92:93], v10, {sr(RC,4)}, s{T1} offen", "w")
    k.srd(RA, S_K, 4 << 20); k.srd(RB, S_V, 4 << 20)
    a(f"s_movk_i32 s{T4}, 0x1000")
    for i, vo in enumerate((7, 8, 9)):
        k.vmem(f"buffer_load_dwordx4 {vr(KR+4*i,4)}, v{vo}, {sr(RA,4)}, 0 offen{NT}", "k")
    for t in range(4):
        so = "0" if t < 2 else f"s{T4}"
        k.vmem(f"buffer_load_dwordx4 {vr(KR+12+4*t,4)}, v{V_QOFF}, {sr(RA,4)}, {so} offen offset:{(t&1)*2048}{NT}", "k")
    for t in range(4):
        so = "0" if t < 2 else f"s{T4}"
        k.vmem(f"buffer_load_dwordx4 {vr(VR+4*t,4)}, v{V_QOFF}, {sr(RB,4)}, {so} offen offset:{(t&1)*2048}{NT}", "v")
    k.stamp("i_w")
    a(f"s_lshl_b32 s{S_CH}, s{S_CB}, 6\ns_lshl_b32 s{T1}, s{S_RB}, 2\ns_add_u32 s{S_CH}, s{S_CH}, s{T1}\ns_add_u32 s{S_CH}, s{S_CH}, s{S_W}")
    a(f"s_add_u32 s{C0+2}, s{S_WS}, {WS_FL}\ns_addc_u32 s{C0+3}, s{S_WS+1}, 0")
    a(f"s_load_dword s{S_TAG}, s[{C0+2}:{C0+3}], {FL_EPOCH}")
    a(f"s_lshl_b32 s{T1}, s{S_CH}, 1\ns_and_b32 s{T1}, s{T1}, 0xfffffffc")
    a(f"s_load_dword s{S_DV}, s[{S_D}:{S_D+1}], s{T1}")
    k.srd(RE, S_X, 4 << 20)
    a(f"s_lshl_b32 s{T2}, s{S_SIG}, 11\ns_lshl_b32 s{T3}, s{S_P}, 11")
    for Tt in range(2):
        k.vmem(f"buffer_load_dwordx4 {vr(XS+4*Tt,4)}, v{V_L16}, {sr(RE,4)}, s{T2} offen offset:{1024*Tt}{NT}", "x")
    for Tt in range(2):
        k.vmem(f"buffer_load_dwordx4 {vr(XP+4*Tt,4)}, v{V_L16}, {sr(RE,4)}, s{T3} offen offset:{1024*Tt}{NT}", "x")
    k.stamp("i_x")
    k.srd(R_FL, C0+2, 32768)
    a(f"s_lshl_b32 s{T1}, s{S_CB}, 8")
    a(f"v_lshl_add_u32 v{V_FOFF}, v0, 2, s{T1}")
    a(f"s_movk_i32 s{T2}, {FL_F1}")
    k.vmem(f"buffer_load_dword v237, v{V_FOFF}, {sr(R_FL,4)}, s{T2} offen sc1", "fp")
    a(f"s_movk_i32 s{T2}, {FL_F3}")
    k.vmem(f"buffer_load_dword v238, v{V_FOFF}, {sr(R_FL,4)}, s{T2} offen sc1", "fp")
    a(f"s_mul_i32 s{S_LB}, s{S_W}, {CH_LDS}")
    k.srd(RD, S_WS, 4 << 20)
    a(f"s_lshl_b32 s{T1}, s{S_CB}, 18\ns_lshl_b32 s{T2}, s{S_RB}, 8\ns_sub_u32 s{T1}, s{T1}, s{T2}")
    a(f"s_and_b32 s{T2}, s{S_W}, 1\ns_lshl_b32 s{T2}, s{T2}, 7\ns_add_u32 s{T1}, s{T1}, s{T2}\ns_add_u32 s{T1}, s{T1}, 3840")
    a(f"s_lshr_b32 s{T2}, s{S_W}, 1\ns_lshl_b32 s{T2}, s{T2}, 17\ns_add_u32 s{T1}, s{T1}, s{T2}")
    a(f"v_lshl_add_u32 v{V_XPO}, v0, 12, s{T1}")
    a(f"v_cmp_gt_u32 vcc, 32, v0\nv_mov_b32 v9, 0x7ffffff0")
    a(f"v_cndmask_b32 v{V_XPO}, v9, v{V_XPO}, vcc")
    a(f"v_mov_b32 v9, {LDS_CNT}\nv_mov_b32 v10, 0\nds_write_b32 v9, v10\nds_write_b32 v9, v10 offset:4")
    a("s_waitcnt lgkmcnt(0)")
    a(f"s_add_u32 s{S_TAG}, s{S_TAG}, 1")
    lb = k.lab("Lnp")
    a(f"s_cmp_lg_u32 s{S_W}, 0\ns_cbranch_scc1 {lb}")
    a(f"s_lshl_b32 s{T0}, s{S_CB}, 7\ns_lshl_b32 s{T1}, s{S_RB}, 3\ns_add_u32 s{T0}, s{T0}, s{T1}\ns_add_u32 s{T0}, s{T0}, {FL_A}")
    a(f"v_mov_b32 v13, s{T0}\nv_mov_b32 v14, s{S_TAG}\nv_mov_b32 v15, s{S_XCC}")
    a("s_mov_b64 exec, 1")
    k.vmem(f"buffer_store_dwordx2 v[14:15], v13, {sr(R_FL,4)}, 0 offen sc1", "pub", optional=True)
    a("s_mov_b64 exec, -1")
    a(f"{lb}:")
    a(f"s_and_b32 s{T0}, s{S_CH}, 1\ns_lshl_b32 s{T1}, s{S_DV}, 16\ns_and_b32 s{S_DV}, s{S_DV}, 0xffff0000\ns_cmp_eq_u32 s{T0}, 0\ns_cselect_b32 s{S_DV}, s{T1}, s{S_DV}")
    a(f"v_add_u32 v5, {R2_S1TAB}, v{V_L16}")
    a(f"s_cmp_eq_u32 s{S_SIG}, 0\ns_cselect_b32 s{T0}, 2, 1\ns_lshl_b32 s{T0}, s{T0}, 10")
    a(f"v_add_u32 v12, s{T0}, v5")
    a(f"s_mul_i32 s{T1}, s{S_W}, {S1_WAVE}\ns_add_u32 s{T1}, s{T1}, {R2}")
    a(f"v_lshrrev_b32 v6, 2, v0\nv_mul_u32_u24 v6, {S1_P}, v6\nv_and_b32 v8, 3, v0\nv_lshl_add_u32 v6, v8, 4, v6\nv_add_u32 v6, s{T1}, v6")
    a(f"v_bfe_u32 v7, v0, 2, 2\nv_lshl_add_u32 v7, v3, 2, v7\nv_mul_u32_u24 v7, {S1_P}, v7")
    a(f"v_and_b32 v8, 3, v0\nv_lshl_add_u32 v7, v8, 3, v7\nv_add_u32 v7, s{T1}, v7")
    k.stamp("issued")
    k.wait("w")
    a("v_and_b32 v10, 7, v0\nv_lshlrev_b32 v10, 5, v10")
    for c in range(8):
        a(f"ds_bpermute_b32 v{WR+2*c}, v10, v92 offset:{4*c}")
        a(f"ds_bpermute_b32 v{WR+2*c+1}, v10, v93 offset:{4*c}")
    k.wait("v", lgkm=0)
    k.stamp("kv")
    a(f"s_lshl_b32 s{T0}, s{S_W}, 10")
    for i in range(5):
        a(f"s_add_u32 m0, s{T0}, {R2_S1TAB + 4096*i}")
        a(f"s_add_u32 s{T1}, s{T0}, {4096*i}")
        k.vmem(f"buffer_load_dwordx4 v{V_L16}, {sr(R_TAB,4)}, s{T1} offen lds", "t1")
    KF, WF, VF, KS = 112, 126, 134, 142
    for m in range(4):
        for i in range(7):
            a(f"v_lshlrev_b32 v{KF+2*i}, 16, v{KR+4*i+m}")
            a(f"v_and_b32 v{KF+2*i+1}, 0xffff0000, v{KR+4*i+m}")
        for h in range(2):
            c = 2*m + h
            a(f"v_lshlrev_b32 v{WF+0+h}, 16, v{WR+2*c}")
            a(f"v_and_b32 v{WF+2+h}, 0xffff0000, v{WR+2*c}")
            a(f"v_lshlrev_b32 v{WF+4+h}, 16, v{WR+2*c+1}")
            a(f"v_and_b32 v{WF+6+h}, 0xffff0000, v{WR+2*c+1}")
        for t in range(4):
            a(f"v_lshlrev_b32 v{VF+2*t}, 16, v{VR+4*t+m}")
            a(f"v_and_b32 v{VF+2*t+1}, 0xffff0000, v{VR+4*t+m}")
        for t in range(4):
            a(f"v_pk_mul_f32 {vr(KS+2*t,2)}, {vr(WF+6,2)}, {vr(KF+2*t,2)}")
        for t in range(4):
            a(f"v_pk_fma_f32 {vr(KS+2*t,2)}, {vr(WF+4,2)}, {vr(KF+2*(t+1),2)}, {vr(KS+2*t,2)}")
        for t in range(4):
            a(f"v_pk_fma_f32 {vr(KS+2*t,2)}, {vr(WF+2,2)}, {vr(KF+2*(t+2),2)}, {vr(KS+2*t,2)}")
        for t in range(4):
            a(f"v_pk_fma_f32 {vr(KS+2*t,2)}, {vr(WF+0,2)}, {vr(KF+2*(t+3),2)}, {vr(KS+2*t,2)}")
        for t in range(4):
            a(f"v_pk_mul_f32 {vr(KS+2*t,2)}, {vr(KS+2*t,2)}, {vr(VF+2*t,2)}")
        for h in range(2):
            c = 2*m + h
            a(f"v_cvt_pk_bf16_f32 v{OUT+2*c}, v{KS+6+h}, v{KS+4+h}")
            a(f"v_cvt_pk_bf16_f32 v{OUT+2*c+1}, v{KS+2+h}, v{KS+0+h}")
        for i in range(4*m, 4*m+4):
            a(f"ds_bpermute_b32 v{OUT+i}, v{V_TP}, v{OUT+i}")
    k.stamp("p1v")
    a("s_waitcnt lgkmcnt(0)")
    k.stamp("p1c")
    def xr_st(sc):
        L = []
        for c in range(8):
            L.append(f"s_mov_b32 s{T1}, {c*4096}")
            L.append(f"buffer_store_dwordx2 {vr(OUT+2*c,2)}, v{V_XRO}, {sr(RD,4)}, s{T1} offen{sc}")
        return L
    for t in xr_st(""):
        if t.startswith("buffer"): k.vmem(t, "xs")
        else: a(t)
    k.stamp("i_xs")
    k.wait("t1")
    a("s_barrier")
    k.stamp("s1go")
    a(f"s_lshl_b32 s{C0}, s{S_CB}, 7\ns_add_u32 s{C0}, s{C0}, {FL_A}")
    a(f"v_and_b32 v13, 15, v0\nv_lshlrev_b32 v13, 3, v13")
    pa_load = f"buffer_load_dwordx2 v[14:15], v13, {sr(R_FL,4)}, s{C0} offen sc1"
    k.vmem(pa_load, "pa")
    k.vmem(f"buffer_load_dword v237, v{V_XPO}, {sr(RD,4)}, 0 offen sc1{NTP}", "xp")
    k.stamp("i_hn")
    B1, AF, TW, TT, GO = 140, 156, 172, 16, 204
    U, W_, F = 92, 100, 108
    B2U, B2W = 140, 156
    for f in range(4):
        a(f"ds_read_b128 {vr(B1+4*f,4)}, v5 offset:{TOFF['S1B1']+1024*f}")
    for Tt in range(2):
        for m in range(4):
            xs, xp = XS+4*Tt+m, XP+4*Tt+m
            f0 = F + 4*(m & 1)
            a(f"v_lshlrev_b32 v{f0}, 16, v{xs}\nv_and_b32 v{f0+1}, 0xffff0000, v{xs}")
            a(f"v_lshlrev_b32 v{f0+2}, 16, v{xp}\nv_and_b32 v{f0+3}, 0xffff0000, v{xp}")
            a(f"v_pk_add_f32 {vr(TT+4*(m&1),2)}, {vr(f0,2)}, {vr(f0+2,2)}")
            a(f"v_pk_add_f32 {vr(TT+4*(m&1)+2,2)}, {vr(f0,2)}, {vr(f0+2,2)} neg_lo:[0,1] neg_hi:[0,1]")
            a(f"v_cvt_pk_bf16_f32 v{U+4*Tt+m}, v{TT+4*(m&1)}, v{TT+4*(m&1)+1}")
            a(f"v_cvt_pk_bf16_f32 v{W_+4*Tt+m}, v{TT+4*(m&1)+2}, v{TT+4*(m&1)+3}")
        a(f"ds_write_b128 v6, {vr(U+4*Tt,4)} offset:{Tt*16*S1_P}")
        a(f"ds_write_b128 v6, {vr(W_+4*Tt,4)} offset:{S1_SEQ+Tt*16*S1_P}")
    a(f"s_lshl_b32 s{T0}, s{S_CH}, 12")
    k.srd(RA, S_H, 4096, add=f"s{T0}")
    a(f"s_add_u32 m0, s{S_LB}, {H_N+64}")
    for m in range(8):
        a(f"ds_read_b128 {vr(TW+4*m,4)}, v5 offset:{TOFF['S1TW']+1024*m}")
        if m & 1: k.vmem(f"buffer_load_dwordx4 v{V_L16}, {sr(RA,4)}, 0 offen offset:{(m>>1)*1024}{NT} lds", "h")
    a("s_waitcnt lgkmcnt(8)")
    for X in range(2):
        for Td in range(2):
            for h in range(2):
                a(f"ds_read_b64_tr_b16 {vr(AF+8*X+4*Td+2*h,2)}, v7 offset:{X*S1_SEQ+h*16*S1_P+32*Td}")
    a("v_mov_b32 v40, 0\nv_mov_b32 v41, 0\nv_mov_b32 v42, 0\nv_mov_b32 v43, 0")
    a(f"v_and_b32 v8, 31, v0\nv_lshl_add_u32 v8, v8, 4, s{S_LB}")
    a("s_waitcnt lgkmcnt(0)")
    k.stamp("s1tr")
    C1 = 76
    def c1(X, Td, Te, c): return C1 + (((X*2+Td)*2+Te)*2+c)*4
    for X in range(2):
        for Td in range(2):
            for Te in range(2):
                for c in range(2):
                    a(f"v_mfma_f32_16x16x32_bf16 {vr(c1(X,Td,Te,c),4)}, {vr(AF+8*X+4*Td,4)}, {vr(B1+8*Te+4*c,4)}, 0")
    for T1_ in range(2):
        for kk in range(2):
            a(f"ds_read_b128 {vr(B2U+8*T1_+4*kk,4)}, v5 offset:{TOFF['S1B2']+4096*T1_+1024*kk}")
    for T1_ in range(2):
        for kk in range(2):
            a(f"ds_read_b128 {vr(B2W+8*T1_+4*kk,4)}, v12 offset:{TOFF['S1B2']+4096*T1_+1024*kk}")
    for m in range(2):
        a(f"ds_write_b128 v8, v[40:43] offset:{m*XSTR+4096}")
    a(f"v_and_b32 v8, 15, v0\nv_lshl_add_u32 v11, v8, 2, s{S_LB}")
    a(f"ds_write_b32 v11, v40 offset:{H_N}")
    def za(X, Te, c): return c1(X, 0, Te, c)
    def twiddle1(X):
        for Te in range(2):
            for Td in range(2):
                cr, ci = c1(X,Td,Te,0), c1(X,Td,Te,1)
                tc, ts = TW + ((Td*2+Te)*2)*4, TW + ((Td*2+Te)*2+1)*4
                t = TT + 8*(Td & 1)
                for o in (0, 2):
                    a(f"v_pk_mul_f32 {vr(t+o,2)}, {vr(cr+o,2)}, {vr(tc+o,2)}")
                    a(f"v_pk_mul_f32 {vr(t+4+o,2)}, {vr(ci+o,2)}, {vr(tc+o,2)}")
                for o in (0, 2):
                    a(f"v_pk_fma_f32 {vr(t+o,2)}, {vr(ci+o,2)}, {vr(ts+o,2)}, {vr(t+o,2)}")
                    a(f"v_pk_fma_f32 {vr(t+4+o,2)}, {vr(cr+o,2)}, {vr(ts+o,2)}, {vr(t+4+o,2)} neg_lo:[1,0,0] neg_hi:[1,0,0]")
                for hh in range(2):
                    a(f"v_cvt_pk_bf16_f32 v{za(X,Te,0)+2*Td+hh}, v{t+2*hh}, v{t+2*hh+1}")
                    a(f"v_cvt_pk_bf16_f32 v{za(X,Te,1)+2*Td+hh}, v{t+4+2*hh}, v{t+4+2*hh+1}")
    twiddle1(0)
    k.stamp("s1tw")
    k.check_or_poll("pa", [pa_load], [f"v_cmp_ne_u32 vcc, s{S_TAG}, v14"])
    a(f"v_cmp_ne_u32 vcc, s{S_XCC}, v15")
    a(f"s_or_b32 s{T0}, vcc_lo, vcc_hi\ns_cmp_eq_u32 s{T0}, 0\ns_cselect_b32 s{S_MODE}, 1, 0")
    if FORCE_GLOBAL: a(f"s_mov_b32 s{S_MODE}, 0")
    a(f"s_lshl_b32 s{T0}, s{S_CB}, 8\ns_lshl_b32 s{T1}, s{S_RB}, 4\ns_add_u32 s{T0}, s{T0}, s{T1}\ns_lshl_b32 s{T1}, s{S_W}, 2\ns_add_u32 s{C0+1}, s{T0}, s{T1}")
    a(f"v_mov_b32 v9, s{C0+1}\nv_mov_b32 v10, s{S_TAG}\ns_movk_i32 s{T2}, {FL_F1}")
    def f1sig(sc):
        L = []
        if sc: L += xr_st(sc) + ["s_waitcnt vmcnt(0)"]
        return L + ["s_mov_b64 exec, 1", f"buffer_store_dword v10, v9, {sr(R_FL,4)}, s{T2} offen{sc}", "s_mov_b64 exec, -1"]
    k.dual(f1sig, "f1")
    k.stamp("mode")
    a(f"s_add_u32 m0, s{S_LB}, {H_S+64}")
    a(f"v_add_u32 v9, 4, v{V_L16}")
    for it in range(4):
        k.vmem(f"buffer_load_dwordx4 v9, {sr(RA,4)}, 0 offen offset:{it*1024} lds", "h")
    a("v_mov_b32 v10, 0")
    k.vmem(f"buffer_load_dword v{V_H01}, v10, {sr(RA,4)}, 0 offen", "h")
    twiddle1(1)
    a("s_waitcnt lgkmcnt(0)")
    C2 = 172
    def c2(X, T1_, Te): return C2 + ((X*2+T1_)*2+Te)*4
    for T1_ in range(2):
        for Te in range(2):
            for X in range(2):
                Bc = B2U if X == 0 else B2W
                a(f"v_mfma_f32_16x16x32_bf16 {vr(c2(X,T1_,Te),4)}, {vr(za(X,Te,0),4)}, {vr(Bc+8*T1_,4)}, 0")
                a(f"v_mfma_f32_16x16x32_bf16 {vr(c2(X,T1_,Te),4)}, {vr(za(X,Te,1),4)}, {vr(Bc+8*T1_+4,4)}, {vr(c2(X,T1_,Te),4)}")
    a(f"v_and_b32 v8, 7, v2\nv_and_b32 v9, 1, v3")
    a(f"s_lshl_b32 s{T0}, s{S_W}, 1\ns_sub_u32 s{T1}, 6, s{T0}")
    a(f"v_or_b32 v10, s{T0}, v9\nv_xor_b32 v10, v10, v8\nv_or_b32 v12, s{T1}, v9\nv_xor_b32 v12, v12, v8")
    a(f"v_lshlrev_b32 v8, 1, v2\nv_lshrrev_b32 v9, 1, v3\nv_add_u32 v8, v8, v9\nv_lshlrev_b32 v8, 7, v8")
    a(f"v_lshl_add_u32 v10, v10, 4, v8\nv_lshl_add_u32 v12, v12, 4, v8")
    a(f"v_add_u32 v10, {GST}, v10\nv_add_u32 v12, {GST+8192}, v12")
    for T1_ in range(2):
        for Te in range(2):
            A_, B_ = c2(0,T1_,Te), c2(1,T1_,Te)
            for o in (0, 2):
                a(f"v_pk_add_f32 {vr(TT+o,2)}, {vr(A_+o,2)}, {vr(B_+o,2)} neg_lo:[0,1] neg_hi:[0,1]")
                a(f"v_pk_add_f32 {vr(TT+4+o,2)}, {vr(A_+o,2)}, {vr(B_+o,2)}")
            for hh in range(2):
                a(f"v_cvt_pk_bf16_f32 v{GO+8*T1_+2*Te+hh}, v{TT+2*hh}, v{TT+2*hh+1}")
                a(f"v_cvt_pk_bf16_f32 v{GO+8*T1_+4+2*Te+hh}, v{TT+4+2*hh}, v{TT+4+2*hh+1}")
        a(f"ds_write_b128 v10, {vr(GO+8*T1_,4)} offset:{4096*T1_}")
        a(f"ds_write_b128 v12, {vr(GO+8*T1_+4,4)} offset:{4096*T1_}")
    a(f"s_movk_i32 s{C0}, {FL_F1}")
    f1_load = f"buffer_load_dword v13, v{V_FOFF}, {sr(R_FL,4)}, s{C0} offen sc1"
    k.vmem(f1_load, "f1l")
    a(f"v_lshrrev_b32 v8, 3, v0\nv_and_b32 v9, 7, v0")
    a(f"v_lshrrev_b32 v10, 1, v8\nv_xor_b32 v10, v10, v9")
    a(f"s_lshr_b32 s{T0}, s{S_W}, 1\ns_lshl_b32 s{T0}, s{T0}, 13\ns_and_b32 s{T1}, s{S_W}, 1\ns_lshl_b32 s{T1}, s{T1}, 12\ns_add_u32 s{T0}, s{T0}, s{T1}\ns_add_u32 s{T0}, s{T0}, {GST}")
    a(f"v_lshlrev_b32 v14, 7, v8\nv_add_u32 v14, s{T0}, v14")
    a(f"v_xor_b32 v12, 4, v10\nv_lshl_add_u32 v10, v10, 4, v14\nv_lshl_add_u32 v12, v12, 4, v14")
    a(f"s_lshl_b32 s{T0}, s2, 7\ns_sub_u32 s{T1}, {2045*32}, s{T0}\ns_cmp_ge_u32 s{S_W}, 2\ns_cselect_b32 s{T0}, s{T1}, s{T0}")
    a(f"s_and_b32 s{T1}, s{S_W}, 1\ns_lshl_b32 s{T1}, s{T1}, 21\ns_add_u32 s{T0}, s{T0}, s{T1}")
    a(f"v_lshlrev_b32 v{V_GOFF}, 16, v8\nv_lshl_add_u32 v{V_GOFF}, v9, 4, v{V_GOFF}\nv_add_u32 v{V_GOFF}, s{T0}, v{V_GOFF}")
    a(f"s_cmp_ge_u32 s{S_W}, 2\ns_cselect_b32 s{T0}, 0, 1\ns_or_b32 s{T0}, s{T0}, s2")
    a(f"s_cmp_eq_u32 s{T0}, 0\ns_cselect_b32 s{T0}, 6, 8")
    a(f"v_cmp_le_u32 vcc, s{T0}, v9")
    a(f"v_add_u32 v14, {(1024-2048)*32 & 0xffffffff}, v{V_GOFF}")
    a(f"v_cndmask_b32 v{V_GOFF}, v{V_GOFF}, v14, vcc")
    a("s_waitcnt lgkmcnt(0)")
    a("s_barrier")
    for i in range(4):
        a(f"ds_read_b128 {vr(GO+4*i,4)}, v{10 if (i&1)==0 else 12} offset:{1024*i}")
    k.stamp("s1")
    a(f"v_and_b32 v6, 1, v0\nv_mul_u32_u24 v6, {XSTR}, v6")
    a("v_bfe_u32 v7, v0, 1, 3\nv_lshlrev_b32 v7, 6, v7\nv_sub_u32 v6, v6, v7")
    a("v_lshrrev_b32 v7, 4, v0\nv_lshl_add_u32 v6, v7, 4, v6")
    a(f"s_add_u32 s{T0}, s{S_LB}, {4032-3584}")
    a(f"v_add_u32 v6, s{T0}, v6")
    a(f"v_and_b32 v8, 15, v0\nv_and_b32 v9, 1, v0\nv_mul_u32_u24 v9, {H_N-H_S+4}, v9")
    a("v_lshl_add_u32 v8, v8, 2, v9\nv_lshl_add_u32 v8, v7, 4, v8")
    a(f"s_add_u32 s{T0}, s{S_LB}, {H_S}")
    a(f"v_add_u32 v8, s{T0}, v8")
    a(f"v_add_u32 v5, s{S_LB}, v{V_L16}")
    a(f"s_lshl_b32 s{T0}, s{S_CH}, 12")
    k.srd(RB, S_WS, 4096, add=f"s{T0}")
    a(f"s_cmp_eq_u32 s{S_MODE}, 0\ns_cselect_b32 s{S_ZO}, {4<<20}, 0\ns_add_u32 s{T0}, s{T0}, s{S_ZO}")
    k.srd(RE, S_WS, 4096, add=f"s{T0}")
    k.check_or_poll("f1l", [f1_load], [f"v_cmp_ne_u32 vcc, s{S_TAG}, v13"])
    k.stamp("f1")
    XA, XB = 16, 32
    for it in range(4):
        k.vmem(f"buffer_load_dwordx4 {vr(XA+4*it,4)}, v{V_L16}, {sr(RB,4)}, 0 offen offset:{it*1024} sc1", "xl")
    k.srd(RC, S_WS, 4 << 20, add=WS_G)
    a("s_waitcnt lgkmcnt(0)")
    for i in range(4):
        a(f"s_mov_b32 s{T2}, {i*8*65536}")
        k.vmem(f"buffer_store_dwordx4 {vr(GO+4*i,4)}, v{V_GOFF}, {sr(RC,4)}, s{T2} offen sc1", "g")
    a(f"v_and_b32 v9, 15, v0\nv_cmp_eq_u32 vcc, 15, v9")
    a(f"v_cndmask_b32 v9, 0, v{V_H01}, vcc")
    a(f"ds_write_b32 v11, v9 offset:{H_S}")
    k.wait("xl")
    k.stamp("xl")
    for it in range(4):
        a(f"v_mov_b32_dpp v{XB+it}, v{XA+4*it} wave_shl:1 row_mask:0xf bank_mask:0xf bound_ctrl:0")
        if it < 3:
            a(f"v_readlane_b32 s{T0}, v{XA+4*(it+1)}, 0")
            a(f"v_writelane_b32 v{XB+it}, s{T0}, 63")
    for it in range(4):
        a(f"ds_write_b128 v5, {vr(XA+4*it,4)} offset:{XSTR+it*1024}")
        for i in range(4):
            hi = XA+4*it+i+1 if i < 3 else XB+it
            a(f"v_alignbit_b32 v{44+4*(it&1)+i}, v{hi}, v{XA+4*it+i}, 16")
        a(f"ds_write_b128 v5, {vr(44+4*(it&1),4)} offset:{it*1024}")
    ACC = 16
    SET = [48, 112]
    def xf(s, u): return SET[s] + 4*u
    def hf(s, J): return SET[s] + 32 + 4*J
    def reads(s, jj):
        L = []
        for u in range(8):
            L.append(f"ds_read_b64 {vr(hf(s,u),2)}, v8 offset:{512*u+64*jj}")
            L.append(f"ds_read_b64 {vr(hf(s,u)+2,2)}, v8 offset:{512*u+64*jj+8}")
            L.append(f"ds_read_b128 {vr(xf(s,u),4)}, v6 offset:{512*(7-u)+64*jj}")
        return L
    def mfmas(s, first):
        L = []; seen = set()
        for J in range(8):
            for u in range(8 - J):
                c = u + J
                cin = vr(ACC+4*c,4) if not (first and c not in seen) else "0"
                seen.add(c)
                L.append(f"v_mfma_f32_16x16x32_bf16 {vr(ACC+4*c,4)}, {vr(xf(s,u),4)}, {vr(hf(s,J),4)}, {cin}")
        return L
    a("s_waitcnt lgkmcnt(0)")
    for r in reads(0, 0): a(r)
    k.stamp("preloop")
    f2_addr = [f"v_lshrrev_b32 v9, 2, v0", f"v_lshlrev_b32 v9, 7, v9", f"v_and_b32 v10, 3, v0", f"v_lshl_add_u32 v11, v10, 4, v9"]
    f2_load = f"buffer_load_dwordx4 v[176:179], v11, {sr(R_FL,4)}, s{C0} offen sc1"
    f2_cmp = [f"v_xor_b32 v{176+i}, s{S_TAG}, v{176+i}" for i in range(4)] + ["v_or3_b32 v176, v176, v177, v178", "v_or_b32 v176, v176, v179", "v_cmp_ne_u32 vcc, 0, v176"]
    for jj in range(8):
        s = jj & 1
        a("s_waitcnt lgkmcnt(0)")
        k.stamp(f"jj{jj}")
        if jj == JJ_SIG:
            k.wait("g")
            k.stamp("gdone")
            lb = k.lab("Lf2")
            a(f"v_mov_b32 v9, {LDS_CNT}\nv_mov_b32 v12, 1\nv_mov_b32 v10, s{S_TAG}")
            a("s_mov_b64 exec, 1")
            a("ds_add_rtn_u32 v12, v9, v12")
            a("s_waitcnt lgkmcnt(0)")
            a(f"v_readfirstlane_b32 s{T0}, v12")
            a(f"s_cmp_lg_u32 s{T0}, 3\ns_cbranch_scc1 {lb}")
            a(f"s_lshr_b32 s{T0}, s2, 4\ns_lshl_b32 s{T0}, s{T0}, 7\ns_and_b32 s{T1}, s2, 15\ns_lshl_b32 s{T1}, s{T1}, 2\ns_add_u32 s{T0}, s{T0}, s{T1}\ns_add_u32 s{T0}, s{T0}, {FL_F2}")
            a(f"v_mov_b32 v9, s{T0}")
            k.vmem(f"buffer_store_dword v10, v9, {sr(R_FL,4)}, 0 offen sc1", "f2", optional=True)
            a(f"{lb}:")
            a("s_mov_b64 exec, -1")
        if EARLY and jj == JJ_F2LD:
            lb = k.lab("Le1")
            a(f"s_cmp_lg_u32 s{S_W}, 0\ns_cbranch_scc1 {lb}")
            for x in f2_addr + [f"s_movk_i32 s{C0}, {FL_F2}"]: a(x)
            k.vmem(f2_load, "f2l", optional=True)
            a(f"{lb}:")
        if EARLY and jj == JJ_F2:
            lb = k.lab("Le2")
            a(f"s_cmp_lg_u32 s{S_W}, 0\ns_cbranch_scc1 {lb}")
            a("s_waitcnt vmcnt(0)")
            for x in f2_cmp: a(x)
            a(f"s_or_b32 s{T0}, vcc_lo, vcc_hi\ns_cmp_eq_u32 s{T0}, 0\ns_cselect_b32 s{T0}, 1, 0")
            a(f"v_mov_b32 v9, {LDS_CNT}\nv_mov_b32 v10, s{T0}\nds_write_b32 v9, v10 offset:4")
            a(f"{lb}:")
        R = reads(1 - s, jj + 1) if jj < 7 else []
        M = mfmas(s, jj == 0)
        extra = []
        if jj == 0:
            extra.append([f"s_movk_i32 s{T4}, 0x1000"] + k.srd_lines(RA, S_Q, 4 << 20))
            for t in range(4):
                so = "0" if t < 2 else f"s{T4}"
                extra.append([("q", f"buffer_load_dwordx4 {vr(V_Q+4*t,4)}, v{V_QOFF}, {sr(RA,4)}, {so} offen offset:{(t&1)*2048}{NT}")])
        if jj == 1:
            extra.append([f"s_lshl_b32 s{T0}, s{S_W}, 10", f"s_lshl_b32 s{T1}, s{S_R}, 12", f"s_add_u32 s{T1}, s{T1}, s{T0}"])
            for i, (off, rdep) in enumerate(((TOFF['S2A1'], True), (TOFF['S2TW'], True), (TOFF['S2B2'], False))):
                extra.append([f"s_add_u32 m0, s{T0}, {R3 + 4096*i}", f"s_add_u32 s{T2}, s{T1 if rdep else T0}, {off}",
                              ("t2", f"buffer_load_dwordx4 v{V_L16}, {sr(R_TAB,4)}, s{T2} offen lds")])
        if jj == 5 and WBL2:
            lbw = k.lab("Lwb")
            extra.append([f"s_lshr_b32 s{T2}, s2, 3", f"s_or_b32 s{T2}, s{T2}, s{S_W}", f"s_cmp_lg_u32 s{T2}, 0", f"s_cbranch_scc1 {lbw}", ("wb", "buffer_wbl2 sc1", True), f"{lbw}:"])
        ri = 0; ei = 0
        for m in M:
            a(m)
            if ri < len(R): a(R[ri]); ri += 1
            if ei < len(extra) and (ri >= 8 or not R):
                for t in extra[ei]:
                    if isinstance(t, tuple): k.vmem(t[1], t[0], optional=(len(t) > 2))
                    else: a(t)
                ei += 1
        assert ei == len(extra)
    k.stamp("loop")
    def gd_setup():
        a(f"s_lshl_b32 s{T0}, s{S_E}, 16\ns_add_u32 s{T0}, s{T0}, {WS_G}")
        k.srd(RB, S_WS, 65536, add=f"s{T0}")
        a(f"s_mul_i32 s{T0}, s{S_W}, {16*S2_PIECE}\ns_add_u32 s{T0}, s{T0}, {R2}\ns_lshl_b32 s{T1}, s{S_W}, 14")
    def gd_lines():
        L = []
        for i in range(16):
            L += [f"s_add_u32 m0, s{T0}, {i*S2_PIECE}", f"s_add_u32 s{T2}, s{T1}, {i*1024}", f"buffer_load_dwordx4 v{V_L16}, {sr(RB,4)}, s{T2} offen sc1 lds"]
        return L
    a(f"s_mov_b32 s{S_GD}, 0")
    if EARLY:
        lb = k.lab("Le3")
        a(f"v_mov_b32 v9, {LDS_CNT}\nds_read_b32 v10, v9 offset:4\ns_waitcnt lgkmcnt(0)\nv_readfirstlane_b32 s{S_GD}, v10")
        a(f"s_cmp_eq_u32 s{S_GD}, 0\ns_cbranch_scc1 {lb}")
        gd_setup()
        for x in gd_lines():
            if x.startswith("buffer"): k.vmem(x, "gde", optional=True)
            else: a(x)
        a(f"{lb}:")
    a("v_and_b32 v2, 15, v0\nv_lshrrev_b32 v3, 4, v0")
    a("v_lshlrev_b32 v4, 2, v2\nv_lshl_add_u32 v4, v3, 7, v4")
    a(f"s_add_u32 s{T0}, s{S_LB}, {XSTR+4092-64-3584}")
    a(f"v_sub_u32 v5, s{T0}, v4")
    KV = 48
    for c in range(8):
        a(f"ds_read_b32 v{KV+2*c}, v5 offset:{3584-512*c+64}")
        a(f"ds_read_b32 v{KV+2*c+1}, v5 offset:{3584-512*c}")
    TM = 64; ZS = 80
    for c in range(8):
        if c in (0, 4): a(f"s_waitcnt lgkmcnt({8 if c == 0 else 0})")
        R0, R1 = KV+2*c, KV+2*c+1
        t = TM + 4*(c & 1)
        a(f"v_and_b32 v{t}, 0xffff0000, v{R0}")
        a(f"v_lshlrev_b32 v{t+1}, 16, v{R0}")
        a(f"v_and_b32 v{t+2}, 0xffff0000, v{R1}")
        a(f"v_lshlrev_b32 v{t+3}, 16, v{R1}")
        for j in range(4):
            a(f"v_fmac_f32 v{ACC+4*c+j}, s{S_DV}, v{t+j}")
        a(f"v_cvt_pk_bf16_f32 v{ZS+2*c}, v{ACC+4*c}, v{ACC+4*c+1}")
        a(f"v_cvt_pk_bf16_f32 v{ZS+2*c+1}, v{ACC+4*c+2}, v{ACC+4*c+3}")
    def zt_st(sc):
        L = []
        for c in range(8):
            L.append(f"buffer_store_dword v{ZS+2*c}, v4, {sr(RE,4)}, 0 offen offset:{512*c}{sc}")
            L.append(f"buffer_store_dword v{ZS+2*c+1}, v4, {sr(RE,4)}, 0 offen offset:{512*c+64}{sc}")
        return L
    k.dual(zt_st, "zs")
    k.stamp("zst")
    k.srd(RC, S_OUT, 8 << 20)
    k.wait("zs")
    a(f"v_mov_b32 v10, s{C0+1}\nv_mov_b32 v11, s{S_TAG}\ns_movk_i32 s{T2}, {FL_F3}")
    k.dual(lambda sc: ["s_mov_b64 exec, 1", f"buffer_store_dword v11, v10, {sr(R_FL,4)}, s{T2} offen{sc}", "s_mov_b64 exec, -1"], "f3")
    k.stamp("f3s")
    lb = k.lab("Lf2w")
    a(f"s_cmp_lg_u32 s{S_W}, 0\ns_cbranch_scc1 {lb}")
    a(f"s_cmp_lg_u32 s{S_GD}, 0\ns_cbranch_scc1 {lb}")
    for x in f2_addr + [f"s_movk_i32 s{C0}, {FL_F2}"] + k.poll_lines([f2_load], f2_cmp, sleep=F2SLEEP): a(x)
    a(f"{lb}:")
    a("s_barrier")
    k.stamp("f2")
    def gdma():
        lb = k.lab("Lgd")
        a(f"s_cmp_lg_u32 s{S_GD}, 0\ns_cbranch_scc1 {lb}")
        gd_setup()
        for x in gd_lines():
            if x.startswith("buffer"): k.vmem(x, "gd", optional=True)
            else: a(x)
        a(f"{lb}:")
    if TAILORD == 0: gdma()
    k.srd(RD, S_WS, 4 << 20, add=f"s{S_ZO}")
    a(f"s_movk_i32 s{C0}, {FL_F3}")
    k.poll([f"buffer_load_dword v12, v{V_FOFF}, {sr(R_FL,4)}, s{C0} offen sc1"], [f"v_cmp_ne_u32 vcc, s{S_TAG}, v12"])
    k.stamp("f3")
    ZR = 112
    for c in range(8):
        a(f"s_mov_b32 s{T3}, {c*4096}")
        k.vmem(f"buffer_load_dwordx2 {vr(ZR+2*c,2)}, v{V_ZOFF}, {sr(RD,4)}, s{T3} offen sc1", "zl")
    if TAILORD == 1: gdma()
    k.wait("zl")
    for hh in range(2):
        for c in range(8):
            a(f"ds_bpermute_b32 v{ZR+2*c+hh}, v{V_TP}, v{ZR+2*c+hh}")
    a("s_waitcnt lgkmcnt(8)")
    k.stamp("zl")
    QF0, OUT3 = 128, 144
    for t in range(4):
        if t == 2: a("s_waitcnt lgkmcnt(0)")
        for m in range(4):
            zf = QF0 + 4*(m & 1); qf = zf + 2
            for h in range(2):
                c = 2*m + h
                src = ZR + 2*c + (t >> 1)
                if t & 1: a(f"v_and_b32 v{zf+h}, 0xffff0000, v{src}")
                else:     a(f"v_lshlrev_b32 v{zf+h}, 16, v{src}")
            a(f"v_lshlrev_b32 v{qf}, 16, v{V_Q+4*t+m}")
            a(f"v_and_b32 v{qf+1}, 0xffff0000, v{V_Q+4*t+m}")
            a(f"v_pk_mul_f32 {vr(qf,2)}, {vr(qf,2)}, {vr(zf,2)}")
            a(f"v_cvt_pk_bf16_f32 v{OUT3+4*t+m}, v{qf}, v{qf+1}")
        a(f"s_mov_b32 s{T1}, {t*4096}")
        k.vmem(f"buffer_store_dwordx4 {vr(OUT3+4*t,4)}, v{V_OOFF}, {sr(RC,4)}, s{T1} offen{O3SC}", "o3")
    k.stamp("p3")
    A1, TW2, B2 = 16, 32, 96
    a(f"v_add_u32 v5, {R3}, v{V_L16}")
    a("v_bfe_u32 v7, v0, 2, 2\nv_lshl_add_u32 v7, v3, 2, v7")
    a(f"v_mul_u32_u24 v7, {S2_PIECE}, v7")
    a("v_and_b32 v8, 3, v0\nv_lshl_add_u32 v7, v8, 3, v7")
    a(f"s_lshl_b32 s{T3}, s{S_W}, 8\ns_add_u32 s{T0}, s{T3}, {R2}")
    a(f"v_add_u32 v7, s{T0}, v7")
    a(f"s_lshl_b32 s{T0}, s{S_W}, 10\ns_add_u32 s{T0}, s{T0}, {R3+4096}")
    a(f"v_lshl_add_u32 v6, v3, 4, s{T0}")
    a("v_lshlrev_b32 v9, 13, v3\nv_lshl_add_u32 v9, v2, 4, v9")
    a(f"s_add_u32 s{T0}, s{T3}, {ZBUF}")
    a(f"v_add_u32 v9, s{T0}, v9")
    a("s_waitcnt vmcnt(4)")
    a("s_barrier")
    k.stamp("s2go")
    P2R, ACC2, BF, t0r, t1r, ur = 96, 128, 192, 216, 220, 228
    lq = []
    def ld(text, tag): a(text); lq.append(tag)
    def lwait(tag):
        idx = max(i for i, t in enumerate(lq) if t == tag)
        a(f"s_waitcnt lgkmcnt({min(15, len(lq) - 1 - idx)})")
    def acc(i, c): return ACC2 + (i*2+c)*4
    def rd(i):
        b = BF + 8*(i % 3)
        for ks in range(2):
            for h in range(2):
                ld(f"ds_read_b64_tr_b16 {vr(b+4*ks+2*h,2)}, v7 offset:{(32*ks+16*h)*S2_PIECE+i*32}", f"rd{i}")
    def tw_rd(i):
        for m in (2*i, 2*i+1): ld(f"ds_read_b128 {vr(TW2+4*m,4)}, v6 offset:{64*m}", f"tw{i}")
    def mf(i):
        b = BF + 8*(i % 3)
        for c in range(2):
            a(f"v_mfma_f32_16x16x32_bf16 {vr(acc(i,c),4)}, {vr(A1+4*c,4)}, {vr(b,4)}, 0")
        for c in range(2):
            a(f"v_mfma_f32_16x16x32_bf16 {vr(acc(i,c),4)}, {vr(A1+8+4*c,4)}, {vr(b+4,4)}, {vr(acc(i,c),4)}")
    def twid(i):
        cr, ci = acc(i,0), acc(i,1)
        tc, ts = TW2 + 8*i, TW2 + 8*i + 4
        t = t0r if (i & 1) == 0 else t1r
        for o in (0, 2):
            a(f"v_pk_mul_f32 {vr(t+o,2)}, {vr(cr+o,2)}, {vr(tc+o,2)}")
            a(f"v_pk_mul_f32 {vr(ur+o,2)}, {vr(ci+o,2)}, {vr(tc+o,2)}")
        for o in (0, 2):
            a(f"v_pk_fma_f32 {vr(t+o,2)}, {vr(ci+o,2)}, {vr(ts+o,2)}, {vr(t+o,2)}")
            a(f"v_pk_fma_f32 {vr(cr+o,2)}, {vr(cr+o,2)}, {vr(ts+o,2)}, {vr(ur+o,2)} neg_lo:[1,0,0] neg_hi:[1,0,0]")
    def pack(ip):
        for j in range(4):
            a(f"v_cvt_pk_bf16_f32 v{P2R+(j*2+0)*4+ip}, v{t0r+j}, v{t1r+j}")
            a(f"v_cvt_pk_bf16_f32 v{P2R+(j*2+1)*4+ip}, v{acc(2*ip,0)+j}, v{acc(2*ip+1,0)+j}")
    for f in range(4): ld(f"ds_read_b128 {vr(A1+4*f,4)}, v5 offset:{1024*f}", "a1")
    rd(0); rd(1); tw_rd(0); tw_rd(1)
    for i in range(8):
        lwait(f"rd{i}")
        mf(i)
        if i + 2 < 8: rd(i + 2)
        if i + 2 < 8: tw_rd(i + 2)
        if i >= 2:
            lwait(f"tw{i-2}")
            twid(i - 2)
            if (i - 2) & 1: pack((i - 2) >> 1)
    for f in range(4): ld(f"ds_read_b128 {vr(A1+4*f,4)}, v5 offset:{8192+1024*f}", "b2")
    B2 = A1
    lwait("tw7")
    twid(6); twid(7); pack(3)
    for j in range(4):
        for c in range(2):
            a(f"ds_write_b128 v9, {vr(P2R+(j*2+c)*4,4)} offset:{j*2048+c*1024}")
    a(f"s_lshl_b32 s{T0}, s{S_W}, 13\ns_add_u32 s{T0}, s{T0}, {ZBUF}")
    a(f"v_add_u32 v10, s{T0}, v{V_L16}")
    a("v_lshrrev_b32 v11, 2, v0\nv_lshlrev_b32 v11, 18, v11\nv_and_b32 v12, 3, v0\nv_lshl_add_u32 v11, v12, 3, v11")
    a("v_lshlrev_b32 v12, 6, v12\nv_and_b32 v13, 60, v0\nv_or_b32 v12, v12, v13")
    a(f"s_lshl_b32 s{T0}, s{S_R}, 4\ns_lshl_b32 s{T1}, s{S_W}, 2\ns_add_u32 s{T0}, s{T0}, s{T1}\ns_lshl_b32 s{T0}, s{T0}, 12")
    a(f"s_lshl_b32 s{T1}, s{S_E}, 5\ns_add_u32 s{T0}, s{T0}, s{T1}\ns_add_u32 s{T3}, s{T0}, 2048")
    a("s_waitcnt lgkmcnt(0)")
    a("s_barrier")
    k.stamp("s2b")
    ZF = 32
    for jj in range(4):
        for c in range(2):
            a(f"ds_read_b128 {vr(ZF+(jj*2+c)*4,4)}, v10 offset:{jj*2048+c*1024}")
    C2b = 64
    for jj in range(4):
        a(f"s_waitcnt lgkmcnt({6-2*jj})")
        for T1_ in range(2):
            d = C2b + (jj*2+T1_)*4
            a(f"v_mfma_f32_16x16x32_bf16 {vr(d,4)}, {vr(ZF+(jj*2)*4,4)}, {vr(B2+8*T1_,4)}, 0")
            a(f"v_mfma_f32_16x16x32_bf16 {vr(d,4)}, {vr(ZF+(jj*2+1)*4,4)}, {vr(B2+8*T1_+4,4)}, {vr(d,4)}")
    O = 96
    for jj in range(4):
        for T1_ in range(2):
            d = C2b + (jj*2+T1_)*4; o = O + 2*(jj*2+T1_)
            a(f"v_cvt_pk_bf16_f32 v{o}, v{d}, v{d+1}")
            a(f"v_cvt_pk_bf16_f32 v{o+1}, v{d+2}, v{d+3}")
            a(f"ds_bpermute_b32 v{o}, v12, v{o}\nds_bpermute_b32 v{o+1}, v12, v{o+1}")
    k.stamp("o2")
    for jj in range(4):
        for T1_ in range(2):
            o = O + 2*(jj*2+T1_)
            a(f"s_waitcnt lgkmcnt({14 - 2*(jj*2+T1_)})")
            a(f"s_add_u32 s{T1}, s{T3}, {jj*4096 + T1_*(16*64*4096)}")
            k.vmem(f"buffer_store_dwordx2 {vr(o,2)}, v11, {sr(RC,4)}, s{T1} offen{O2SC}", "o2")
    lb = k.lab("Lne")
    a(f"s_or_b32 s{T0}, s2, s{S_W}\ns_cmp_lg_u32 s{T0}, 0\ns_cbranch_scc1 {lb}")
    a(f"v_mov_b32 v8, {FL_EPOCH}\nv_mov_b32 v9, s{S_TAG}")
    a("s_mov_b64 exec, 1")
    a(f"buffer_store_dword v9, v8, {sr(R_FL,4)}, 0 offen")
    a("s_mov_b64 exec, -1")
    a(f"{lb}:")
    if PROF:
        k.stamp("fin0")
        a("s_waitcnt vmcnt(0)")
        k.stamp("fin")
        a(f"s_memrealtime s[76:77]")
        a("s_waitcnt lgkmcnt(0)")
        a(f"s_add_u32 s{C0}, s{S_WS}, {64<<20}\ns_addc_u32 s{C0+1}, s{S_WS+1}, 0")
        a(f"s_lshl_b32 s{T0}, s{S_SIG}, 6\nv_mov_b32 v0, s{T0}")
        a("s_mov_b64 exec, 1")
        for i in range(k.nstamp):
            a(f"s_sub_u32 s{T1}, s{ST0+2*i}, s{ST0}\nv_mov_b32 v4, s{T1}\nglobal_store_dword v0, v4, s[{C0}:{C0+1}] offset:{4*i}\ns_nop 1")
        a(f"v_mov_b32 v4, s78\nglobal_store_dword v0, v4, s[{C0}:{C0+1}] offset:48\ns_nop 1")
        a(f"v_mov_b32 v4, s76\nglobal_store_dword v0, v4, s[{C0}:{C0+1}] offset:52\ns_nop 1")
        a(f"v_mov_b32 v4, {k.nstamp}\nglobal_store_dword v0, v4, s[{C0}:{C0+1}] offset:56\ns_nop 1")
        a(f"s_lshl_b32 s{T1}, s{S_GD}, 1\ns_or_b32 s{T1}, s{T1}, s{S_MODE}\ns_min_u32 s{T1}, s{T1}, 3")
        a(f"v_mov_b32 v4, s{T1}\nglobal_store_dword v0, v4, s[{C0}:{C0+1}] offset:60")
        if E("DBGOUT"):
            lbd = k.lab("Ldbg")
            a(f"s_load_dwordx2 s[{C0+2}:{C0+3}], s[0:1], 96\ns_waitcnt lgkmcnt(0)")
            a(f"s_lshl_b32 s{T0}, s{S_SIG}, 0\ns_cmp_lg_u32 s{S_SIG}, {int(E('DBGOUT'))}\ns_cbranch_scc1 {lbd}")
            a("v_mov_b32 v0, 0")
            for i in range(k.nstamp):
                a(f"s_sub_u32 s{T1}, s{ST0+2*i}, s{ST0}\nv_mov_b32 v4, s{T1}\nglobal_store_dword v0, v4, s[{C0+2}:{C0+3}] offset:{4*i}\ns_nop 1")
            a(f"s_sub_u32 s{T1}, s76, s78\nv_mov_b32 v4, s{T1}\nglobal_store_dword v0, v4, s[{C0+2}:{C0+3}] offset:60")
            a(f"{lbd}:")
        print("stamps:", k.names)
    a("s_endpgm")
    return k.a.lines + k.tail.lines + ["L_end:", "s_endpgm"]

def main(out_path):
    lines = fix_hazards(build())
    hdr = open(os.path.join(os.path.dirname(__file__), "header.txt")).read().rstrip("\n").split("\n")
    L = list(hdr)
    L.append(f"; @launch grid=(256,1,1) block=(256,1,1) lds={LDS_BYTES}")
    L += ['.amdgcn_target "amdgcn-amd-amdhsa--gfx950"', ".text", f".globl {KNAME}", ".p2align 8", f".type {KNAME},@function", f"{KNAME}:"]
    L += lines
    L += ["L_code_end:", ".p2align 8", ".type L_tables,@object", "L_tables:"] + TAB_LINES + [".size L_tables, .-L_tables"]
    L += ['.section .rodata,"a"', ".p2align 6", f".amdhsa_kernel {KNAME}", "  .amdhsa_next_free_vgpr 256", "  .amdhsa_next_free_sgpr 102",
          "  .amdhsa_accum_offset 256", "  .amdhsa_group_segment_fixed_size 0", "  .amdhsa_kernarg_size 112",
          "  .amdhsa_user_sgpr_count 2", "  .amdhsa_user_sgpr_kernarg_segment_ptr 1", "  .amdhsa_system_sgpr_workgroup_id_x 1",
          "  .amdhsa_float_denorm_mode_32 3", ".end_amdhsa_kernel"]
    open(out_path, "w").write("\n".join(L) + "\n")

if __name__ == "__main__":
    main(sys.argv[1] if len(sys.argv) > 1 else f"cdna_kernels/{NAME}.s")
```

```python
import sys, os
sys.path.insert(0, os.path.dirname(__file__))
from asmlib import *
import tables

NAME = "concat_heads__ssm_conv_h3__spectral_fnet__prompt"
KNAME = NAME + "_kernel"
WS_XR, WS_ZT, WS_G, WS_FL = 0, 0, 8 << 20, 12 << 20
FL_EPOCH, FL_A, FL_F1, FL_F3, FL_F2 = 0, 4096, 8192, 12288, 16384
SRD3 = "0x20000"
E = os.environ.get
PROF = E("PROF") == "1"
NT = " nt" if E("NT", "1") == "1" else ""
NTP = " nt" if E("NTP", "1") == "1" else ""
STAMPS = set(E("STAMPS", "entry,s1go,s1,kv,p1c,f1,preloop,loop,s2go,o2,fin").split(","))
FORCE_GLOBAL = E("FORCE_GLOBAL") == "1"
JJ_SIG = int(E("JJ_SIG", 2)); JJ_F2LD = int(E("JJ_F2LD", 6)); JJ_F2 = int(E("JJ_F2", 7))
O3SC = E("O3SC", " sc1"); O2SC = E("O2SC", ""); WBL2 = int(E("WBL2", 0)); TAILORD = int(E("TAILORD", 0)); EARLY = 0; ZI = int(E("ZI", 2)); O2FIRST = int(E("O2FIRST", 1)); F2SLEEP = int(E("F2SLEEP", 2))

T = tables.build(four=True)
TAB_ORDER = ['S1B1', 'S1TW', 'S1B2', 'S2A1', 'S2TW', 'S2B2']
TAB_LINES, TOFF, TAB_BYTES = tables.emit_tables(T, TAB_ORDER)

XSTR = 4640
H_S = 2 * XSTR
H_N = H_S + 4224
CH_LDS = H_N + 4160
R2 = 4 * CH_LDS
S1_P = 96; S1_SEQ = 32 * S1_P; S1_WAVE = 2 * S1_SEQ
R2_S1TAB = R2 + 4 * S1_WAVE
GST = R2 + 45056
S2_PIECE = 1056
R3 = R2 + 64 * S2_PIECE
LDS_CNT = R3 + 12288
LDS_BYTES = LDS_CNT + 64
ZBUF = 0
ZTL = 36864

S_Q, S_K, S_V, S_SK, S_H, S_D, S_X = 4, 6, 8, 10, 12, 14, 16
S_TABP = 18
S_OUT, S_WS = 20, 22
S_CB, S_RB, S_W, S_TAG, S_MODE, S_CH = 24, 25, 26, 27, 28, 29
S_XCC, S_SIG, S_P, S_LB, S_DV, S_E, S_R = 30, 31, 32, 33, 34, 35, 3
RA, RB, RC, RD, RE, R_FL, R_TAB = 36, 40, 44, 48, 52, 56, 60
T0, T1, T2, T3, T4, S_GD = 64, 65, 66, 67, 68, 69
C0 = 70
S_ZO = 75
S_DBG = 76
S_LAST = 74
ST0 = 80
V_Q = 240
V_ZOFF, V_OOFF, V_QOFF, V_FOFF, V_L16 = 232, 233, 234, 235, 236
V_DUM = 228
V_GOFF, V_XRO, V_XPO, V_H01 = 224, 225, 226, 227
V_TP = 239

class K:
    def __init__(self):
        self.a = Asm(); self.tail = Asm()
        self.vm = []; self.nlab = 0; self.nstamp = 0; self.names = []
    def lab(self, p="L"):
        self.nlab += 1; return f"{p}_{self.nlab}"
    def vmem(self, text, tag, optional=False):
        self.a(text); self.vm.append((tag, optional))
    def count_after(self, tag):
        idx = max(i for i, (t, o) in enumerate(self.vm) if t == tag)
        n = sum(1 for (t, o) in self.vm[idx+1:] if not o)
        assert n <= 63, n
        return n
    def wait(self, tag, lgkm=None):
        self.a(f"s_waitcnt vmcnt({self.count_after(tag)})" + (f" lgkmcnt({lgkm})" if lgkm is not None else ""))
    def srd_lines(self, d, base, nbytes, add=None):
        if add is None: L = [f"s_mov_b32 s{d}, s{base}", f"s_mov_b32 s{d+1}, s{base+1}"]
        else: L = [f"s_add_u32 s{d}, s{base}, {add}", f"s_addc_u32 s{d+1}, s{base+1}, 0"]
        return L + [f"s_mov_b32 s{d+2}, {nbytes}", f"s_mov_b32 s{d+3}, {SRD3}"]
    def srd(self, d, base, nbytes, add=None):
        for t in self.srd_lines(d, base, nbytes, add): self.a(t)
    def stamp(self, name=""):
        if PROF and name in STAMPS:
            self.names.append(name)
            assert self.nstamp < 11
            self.a(f"s_memtime s[{ST0+2*self.nstamp}:{ST0+2*self.nstamp+1}]")
            self.nstamp += 1
    def dual(self, fn, tag):
        lg, lj = self.lab("Lg"), self.lab("Lj")
        a = self.a
        a(f"s_cmp_eq_u32 s{S_MODE}, 0")
        a(f"s_cbranch_scc1 {lg}")
        for t in fn(""):
            if t.startswith(("buffer_", "global_")): self.vmem(t, tag)
            else: a(t)
        a(f"{lj}:")
        self.tail(f"{lg}:")
        for t in fn(" sc1"): self.tail(t)
        self.tail(f"s_branch {lj}")
    def poll_lines(self, loads, cmps, sleep=1):
        lp, ok = self.lab("Lp"), self.lab("Lok")
        L = [f"s_mov_b32 s{T4}, 0x100000", f"{lp}:"] + loads + ["s_waitcnt vmcnt(0)"] + cmps
        L += [f"s_cbranch_vccz {ok}", f"s_sleep {sleep}", f"s_sub_u32 s{T4}, s{T4}, 1", f"s_cmp_lg_u32 s{T4}, 0", f"s_cbranch_scc1 {lp}", f"{ok}:"]
        return L
    def poll(self, loads, cmps, sleep=1):
        for t in self.poll_lines(loads, cmps, sleep): self.a(t)
    def check_or_poll(self, tag, loads, cmps, sleep=1):
        lg, lj = self.lab("Lr"), self.lab("Lrj")
        self.wait(tag)
        for t in cmps: self.a(t)
        self.a(f"s_cbranch_vccnz {lg}")
        self.a(f"{lj}:")
        self.tail(f"{lg}:")
        for t in self.poll_lines(loads, cmps, sleep): self.tail(t)
        self.tail(f"s_branch {lj}")

def build():
    k = K(); a = k.a
    KR, VR, WR = 16, 44, 60
    XS, XP = 76, 84
    OUT = V_Q
    a("s_cmp_ge_u32 s2, 256")
    a("s_cbranch_scc1 L_end")
    if PROF: a(f"s_memrealtime s[78:79]")
    k.stamp("entry")
    a("s_load_dwordx16 s[4:19], s[0:1], 0")
    a("s_load_dwordx2 s[20:21], s[0:1], 88")
    a("s_load_dwordx2 s[22:23], s[0:1], 104")
    a("v_lshrrev_b32 v1, 6, v0\nv_and_b32 v0, 63, v0")
    a(f"s_getpc_b64 s[{C0}:{C0+1}]")
    a("L_pc0:")
    a(f"v_readfirstlane_b32 s{S_W}, v1")
    a(f"v_lshlrev_b32 v{V_L16}, 4, v0")
    a(f"s_lshr_b32 s{T1}, s2, 3\ns_lshl_b32 s{T1}, s{T1}, 2\ns_add_u32 s{T1}, s{T1}, s{S_W}\ns_and_b32 s{T1}, s{T1}, 31\ns_lshl_b32 s{T1}, s{T1}, 10")
    a(f"s_min_u32 s{T1}, s{T1}, L_code_end-L_pc0-1024")
    a(f"s_add_u32 s{C0}, s{C0}, s{T1}\ns_addc_u32 s{C0+1}, s{C0+1}, 0")
    k.vmem(f"global_load_dwordx4 {vr(V_DUM,4)}, v{V_L16}, s[{C0}:{C0+1}]", "cp")
    a(f"s_getpc_b64 s[{C0+4}:{C0+5}]")
    a(f"s_add_u32 s{C0+4}, s{C0+4}, L_tables-.\ns_addc_u32 s{C0+5}, s{C0+5}, 0")
    k.srd(R_TAB, C0+4, TAB_BYTES)
    a(f"s_getreg_b32 s{S_XCC}, hwreg(HW_REG_XCC_ID, 0, 4)")
    a(f"s_and_b32 s{S_CB}, s2, 7\ns_lshr_b32 s{S_RB}, s2, 3\ns_lshr_b32 s{T0}, s{S_RB}, 4")
    a(f"s_lshl_b32 s{S_E}, s{S_CB}, 3\ns_lshr_b32 s{T1}, s{S_RB}, 2\ns_add_u32 s{S_E}, s{S_E}, s{T1}\ns_and_b32 s{S_R}, s{S_RB}, 3")
    a(f"s_lshl_b32 s{S_CB}, s{S_CB}, 1\ns_add_u32 s{S_CB}, s{S_CB}, s{T0}\ns_and_b32 s{S_RB}, s{S_RB}, 15")
    a(f"s_lshl_b32 s{S_SIG}, s2, 2\ns_add_u32 s{S_SIG}, s{S_SIG}, s{S_W}")
    a(f"s_sub_u32 s{S_P}, 2048, s{S_SIG}\ns_cmp_eq_u32 s{S_SIG}, 0\ns_cselect_b32 s{S_P}, 1024, s{S_P}")
    a("v_and_b32 v2, 7, v0\nv_lshrrev_b32 v3, 3, v0")
    a(f"s_lshl_b32 s{T0}, s{S_RB}, 7\ns_lshl_b32 s{T1}, s{S_W}, 5\ns_add_u32 s{T0}, s{T0}, s{T1}")
    a(f"v_lshl_add_u32 v4, v3, 2, s{T0}")
    a(f"s_lshl_b32 s{T1}, s{S_CB}, 7")
    a(f"v_lshl_add_u32 v5, v2, 4, s{T1}")
    a(f"v_lshl_add_u32 v{V_QOFF}, v4, 11, v5")
    a(f"v_add_u32 v7, 0xffffe800, v{V_QOFF}\nv_add_u32 v8, 0xfffff000, v{V_QOFF}\nv_add_u32 v9, 0xfffff800, v{V_QOFF}")
    a(f"s_lshl_b32 s{T1}, s{S_CB}, 18")
    a(f"v_lshl_add_u32 v11, v3, 15, s{T1}")
    a(f"v_lshl_add_u32 v12, v2, 2, s{T0}\nv_lshlrev_b32 v12, 1, v12")
    a(f"v_add_u32 v{V_ZOFF}, v11, v12")
    a(f"v_sub_u32 v{V_XRO}, v11, v12\nv_add_u32 v{V_XRO}, 4088, v{V_XRO}")
    a(f"v_lshlrev_b32 v{V_TP}, 5, v2\nv_lshl_or_b32 v{V_TP}, v3, 2, v{V_TP}")
    a(f"v_lshl_add_u32 v{V_OOFF}, v4, 12, v5")
    a("v_and_b32 v2, 15, v0\nv_lshrrev_b32 v3, 4, v0")
    a("s_waitcnt lgkmcnt(0)")
    k.stamp("karg")
    k.srd(RC, S_SK, 8192)
    a(f"v_lshlrev_b32 v10, 3, v0\ns_lshl_b32 s{T1}, s{S_CB}, 9")
    k.vmem(f"buffer_load_dwordx2 v[92:93], v10, {sr(RC,4)}, s{T1} offen", "w")
    k.srd(RA, S_K, 4 << 20); k.srd(RB, S_V, 4 << 20)
    a(f"s_movk_i32 s{T4}, 0x1000")
    for i, vo in enumerate((7, 8, 9)):
        k.vmem(f"buffer_load_dwordx4 {vr(KR+4*i,4)}, v{vo}, {sr(RA,4)}, 0 offen{NT}", "k")
    for t in range(4):
        so = "0" if t < 2 else f"s{T4}"
        k.vmem(f"buffer_load_dwordx4 {vr(KR+12+4*t,4)}, v{V_QOFF}, {sr(RA,4)}, {so} offen offset:{(t&1)*2048}{NT}", "k")
    for t in range(4):
        so = "0" if t < 2 else f"s{T4}"
        k.vmem(f"buffer_load_dwordx4 {vr(VR+4*t,4)}, v{V_QOFF}, {sr(RB,4)}, {so} offen offset:{(t&1)*2048}{NT}", "v")
    k.stamp("i_w")
    a(f"s_lshl_b32 s{S_CH}, s{S_CB}, 6\ns_lshl_b32 s{T1}, s{S_RB}, 2\ns_add_u32 s{S_CH}, s{S_CH}, s{T1}\ns_add_u32 s{S_CH}, s{S_CH}, s{S_W}")
    a(f"s_add_u32 s{C0+2}, s{S_WS}, {WS_FL}\ns_addc_u32 s{C0+3}, s{S_WS+1}, 0")
    a(f"s_load_dword s{S_TAG}, s[{C0+2}:{C0+3}], {FL_EPOCH}")
    a(f"s_lshl_b32 s{T1}, s{S_CH}, 1\ns_and_b32 s{T1}, s{T1}, 0xfffffffc")
    a(f"s_load_dword s{S_DV}, s[{S_D}:{S_D+1}], s{T1}")
    k.srd(RE, S_X, 4 << 20)
    a(f"s_lshl_b32 s{T2}, s{S_SIG}, 11\ns_lshl_b32 s{T3}, s{S_P}, 11")
    for Tt in range(2):
        k.vmem(f"buffer_load_dwordx4 {vr(XS+4*Tt,4)}, v{V_L16}, {sr(RE,4)}, s{T2} offen offset:{1024*Tt}{NT}", "x")
    for Tt in range(2):
        k.vmem(f"buffer_load_dwordx4 {vr(XP+4*Tt,4)}, v{V_L16}, {sr(RE,4)}, s{T3} offen offset:{1024*Tt}{NT}", "x")
    k.stamp("i_x")
    k.srd(R_FL, C0+2, 32768)
    a(f"s_lshl_b32 s{T1}, s{S_CB}, 8")
    a(f"v_lshl_add_u32 v{V_FOFF}, v0, 2, s{T1}")
    a(f"s_movk_i32 s{T2}, {FL_F1}")
    k.vmem(f"buffer_load_dword v237, v{V_FOFF}, {sr(R_FL,4)}, s{T2} offen sc1", "fp")
    a(f"s_movk_i32 s{T2}, {FL_F3}")
    k.vmem(f"buffer_load_dword v238, v{V_FOFF}, {sr(R_FL,4)}, s{T2} offen sc1", "fp")
    a(f"s_mul_i32 s{S_LB}, s{S_W}, {CH_LDS}")
    k.srd(RD, S_WS, 4 << 20)
    a(f"s_lshl_b32 s{T1}, s{S_CB}, 18\ns_lshl_b32 s{T2}, s{S_RB}, 8\ns_sub_u32 s{T1}, s{T1}, s{T2}")
    a(f"s_and_b32 s{T2}, s{S_W}, 1\ns_lshl_b32 s{T2}, s{T2}, 7\ns_add_u32 s{T1}, s{T1}, s{T2}\ns_add_u32 s{T1}, s{T1}, 3840")
    a(f"s_lshr_b32 s{T2}, s{S_W}, 1\ns_lshl_b32 s{T2}, s{T2}, 17\ns_add_u32 s{T1}, s{T1}, s{T2}")
    a(f"v_lshl_add_u32 v{V_XPO}, v0, 12, s{T1}")
    a(f"v_cmp_gt_u32 vcc, 32, v0\nv_mov_b32 v9, 0x7ffffff0")
    a(f"v_cndmask_b32 v{V_XPO}, v9, v{V_XPO}, vcc")
    a(f"v_mov_b32 v9, {LDS_CNT}\nv_mov_b32 v10, 0\nds_write_b32 v9, v10\nds_write_b32 v9, v10 offset:4")
    a("s_waitcnt lgkmcnt(0)")
    a(f"s_add_u32 s{S_TAG}, s{S_TAG}, 1")
    lb = k.lab("Lnp")
    a(f"s_cmp_lg_u32 s{S_W}, 0\ns_cbranch_scc1 {lb}")
    a(f"s_lshl_b32 s{T0}, s{S_CB}, 7\ns_lshl_b32 s{T1}, s{S_RB}, 3\ns_add_u32 s{T0}, s{T0}, s{T1}\ns_add_u32 s{T0}, s{T0}, {FL_A}")
    a(f"v_mov_b32 v13, s{T0}\nv_mov_b32 v14, s{S_TAG}\nv_mov_b32 v15, s{S_XCC}")
    a("s_mov_b64 exec, 1")
    k.vmem(f"buffer_store_dwordx2 v[14:15], v13, {sr(R_FL,4)}, 0 offen sc1", "pub", optional=True)
    a("s_mov_b64 exec, -1")
    a(f"{lb}:")
    a(f"s_and_b32 s{T0}, s{S_CH}, 1\ns_lshl_b32 s{T1}, s{S_DV}, 16\ns_and_b32 s{S_DV}, s{S_DV}, 0xffff0000\ns_cmp_eq_u32 s{T0}, 0\ns_cselect_b32 s{S_DV}, s{T1}, s{S_DV}")
    a(f"v_add_u32 v5, {R2_S1TAB}, v{V_L16}")
    a(f"s_cmp_eq_u32 s{S_SIG}, 0\ns_cselect_b32 s{T0}, 2, 1\ns_lshl_b32 s{T0}, s{T0}, 10")
    a(f"v_add_u32 v12, s{T0}, v5")
    a(f"s_mul_i32 s{T1}, s{S_W}, {S1_WAVE}\ns_add_u32 s{T1}, s{T1}, {R2}")
    a(f"v_lshrrev_b32 v6, 2, v0\nv_mul_u32_u24 v6, {S1_P}, v6\nv_and_b32 v8, 3, v0\nv_lshl_add_u32 v6, v8, 4, v6\nv_add_u32 v6, s{T1}, v6")
    a(f"v_bfe_u32 v7, v0, 2, 2\nv_lshl_add_u32 v7, v3, 2, v7\nv_mul_u32_u24 v7, {S1_P}, v7")
    a(f"v_and_b32 v8, 3, v0\nv_lshl_add_u32 v7, v8, 3, v7\nv_add_u32 v7, s{T1}, v7")
    k.stamp("issued")
    k.wait("w")
    a("v_and_b32 v10, 7, v0\nv_lshlrev_b32 v10, 5, v10")
    for c in range(8):
        a(f"ds_bpermute_b32 v{WR+2*c}, v10, v92 offset:{4*c}")
        a(f"ds_bpermute_b32 v{WR+2*c+1}, v10, v93 offset:{4*c}")
    k.wait("v", lgkm=0)
    k.stamp("kv")
    a(f"s_lshl_b32 s{T0}, s{S_W}, 10")
    for i in range(5):
        a(f"s_add_u32 m0, s{T0}, {R2_S1TAB + 4096*i}")
        a(f"s_add_u32 s{T1}, s{T0}, {4096*i}")
        k.vmem(f"buffer_load_dwordx4 v{V_L16}, {sr(R_TAB,4)}, s{T1} offen lds", "t1")
    KF, WF, VF, KS = 112, 126, 134, 142
    for m in range(4):
        for i in range(7):
            a(f"v_lshlrev_b32 v{KF+2*i}, 16, v{KR+4*i+m}")
            a(f"v_and_b32 v{KF+2*i+1}, 0xffff0000, v{KR+4*i+m}")
        for h in range(2):
            c = 2*m + h
            a(f"v_lshlrev_b32 v{WF+0+h}, 16, v{WR+2*c}")
            a(f"v_and_b32 v{WF+2+h}, 0xffff0000, v{WR+2*c}")
            a(f"v_lshlrev_b32 v{WF+4+h}, 16, v{WR+2*c+1}")
            a(f"v_and_b32 v{WF+6+h}, 0xffff0000, v{WR+2*c+1}")
        for t in range(4):
            a(f"v_lshlrev_b32 v{VF+2*t}, 16, v{VR+4*t+m}")
            a(f"v_and_b32 v{VF+2*t+1}, 0xffff0000, v{VR+4*t+m}")
        for t in range(4):
            a(f"v_pk_mul_f32 {vr(KS+2*t,2)}, {vr(WF+6,2)}, {vr(KF+2*t,2)}")
        for t in range(4):
            a(f"v_pk_fma_f32 {vr(KS+2*t,2)}, {vr(WF+4,2)}, {vr(KF+2*(t+1),2)}, {vr(KS+2*t,2)}")
        for t in range(4):
            a(f"v_pk_fma_f32 {vr(KS+2*t,2)}, {vr(WF+2,2)}, {vr(KF+2*(t+2),2)}, {vr(KS+2*t,2)}")
        for t in range(4):
            a(f"v_pk_fma_f32 {vr(KS+2*t,2)}, {vr(WF+0,2)}, {vr(KF+2*(t+3),2)}, {vr(KS+2*t,2)}")
        for t in range(4):
            a(f"v_pk_mul_f32 {vr(KS+2*t,2)}, {vr(KS+2*t,2)}, {vr(VF+2*t,2)}")
        for h in range(2):
            c = 2*m + h
            a(f"v_cvt_pk_bf16_f32 v{OUT+2*c}, v{KS+6+h}, v{KS+4+h}")
            a(f"v_cvt_pk_bf16_f32 v{OUT+2*c+1}, v{KS+2+h}, v{KS+0+h}")
        for i in range(4*m, 4*m+4):
            a(f"ds_bpermute_b32 v{OUT+i}, v{V_TP}, v{OUT+i}")
    k.stamp("p1v")
    a("s_waitcnt lgkmcnt(0)")
    k.stamp("p1c")
    def xr_st(sc):
        L = []
        for c in range(8):
            L.append(f"s_mov_b32 s{T1}, {c*4096}")
            L.append(f"buffer_store_dwordx2 {vr(OUT+2*c,2)}, v{V_XRO}, {sr(RD,4)}, s{T1} offen{sc}")
        return L
    for t in xr_st(""):
        if t.startswith("buffer"): k.vmem(t, "xs")
        else: a(t)
    k.stamp("i_xs")
    k.wait("t1")
    a("s_barrier")
    k.stamp("s1go")
    a(f"s_lshl_b32 s{C0}, s{S_CB}, 7\ns_add_u32 s{C0}, s{C0}, {FL_A}")
    a(f"v_and_b32 v13, 15, v0\nv_lshlrev_b32 v13, 3, v13")
    pa_load = f"buffer_load_dwordx2 v[14:15], v13, {sr(R_FL,4)}, s{C0} offen sc1"
    k.vmem(pa_load, "pa")
    k.vmem(f"buffer_load_dword v237, v{V_XPO}, {sr(RD,4)}, 0 offen sc1{NTP}", "xp")
    k.stamp("i_hn")
    B1, AF, TW, TT, GO = 140, 156, 172, 16, 204
    U, W_, F = 92, 100, 108
    B2U, B2W = 140, 156
    for f in range(4):
        a(f"ds_read_b128 {vr(B1+4*f,4)}, v5 offset:{TOFF['S1B1']+1024*f}")
    for Tt in range(2):
        for m in range(4):
            xs, xp = XS+4*Tt+m, XP+4*Tt+m
            f0 = F + 4*(m & 1)
            a(f"v_lshlrev_b32 v{f0}, 16, v{xs}\nv_and_b32 v{f0+1}, 0xffff0000, v{xs}")
            a(f"v_lshlrev_b32 v{f0+2}, 16, v{xp}\nv_and_b32 v{f0+3}, 0xffff0000, v{xp}")
            a(f"v_pk_add_f32 {vr(TT+4*(m&1),2)}, {vr(f0,2)}, {vr(f0+2,2)}")
            a(f"v_pk_add_f32 {vr(TT+4*(m&1)+2,2)}, {vr(f0,2)}, {vr(f0+2,2)} neg_lo:[0,1] neg_hi:[0,1]")
            a(f"v_cvt_pk_bf16_f32 v{U+4*Tt+m}, v{TT+4*(m&1)}, v{TT+4*(m&1)+1}")
            a(f"v_cvt_pk_bf16_f32 v{W_+4*Tt+m}, v{TT+4*(m&1)+2}, v{TT+4*(m&1)+3}")
        a(f"ds_write_b128 v6, {vr(U+4*Tt,4)} offset:{Tt*16*S1_P}")
        a(f"ds_write_b128 v6, {vr(W_+4*Tt,4)} offset:{S1_SEQ+Tt*16*S1_P}")
    a(f"s_lshl_b32 s{T0}, s{S_CH}, 12")
    k.srd(RA, S_H, 4096, add=f"s{T0}")
    a(f"s_add_u32 m0, s{S_LB}, {H_N+64}")
    for m in range(8):
        a(f"ds_read_b128 {vr(TW+4*m,4)}, v5 offset:{TOFF['S1TW']+1024*m}")
        if m & 1: k.vmem(f"buffer_load_dwordx4 v{V_L16}, {sr(RA,4)}, 0 offen offset:{(m>>1)*1024}{NT} lds", "h")
    a("s_waitcnt lgkmcnt(8)")
    for X in range(2):
        for Td in range(2):
            for h in range(2):
                a(f"ds_read_b64_tr_b16 {vr(AF+8*X+4*Td+2*h,2)}, v7 offset:{X*S1_SEQ+h*16*S1_P+32*Td}")
    a("v_mov_b32 v40, 0\nv_mov_b32 v41, 0\nv_mov_b32 v42, 0\nv_mov_b32 v43, 0")
    a(f"v_and_b32 v8, 31, v0\nv_lshl_add_u32 v8, v8, 4, s{S_LB}")
    a("s_waitcnt lgkmcnt(0)")
    k.stamp("s1tr")
    C1 = 76
    def c1(X, Td, Te, c): return C1 + (((X*2+Td)*2+Te)*2+c)*4
    for X in range(2):
        for Td in range(2):
            for Te in range(2):
                for c in range(2):
                    a(f"v_mfma_f32_16x16x32_bf16 {vr(c1(X,Td,Te,c),4)}, {vr(AF+8*X+4*Td,4)}, {vr(B1+8*Te+4*c,4)}, 0")
    for T1_ in range(2):
        for kk in range(2):
            a(f"ds_read_b128 {vr(B2U+8*T1_+4*kk,4)}, v5 offset:{TOFF['S1B2']+4096*T1_+1024*kk}")
    for T1_ in range(2):
        for kk in range(2):
            a(f"ds_read_b128 {vr(B2W+8*T1_+4*kk,4)}, v12 offset:{TOFF['S1B2']+4096*T1_+1024*kk}")
    for m in range(2):
        a(f"ds_write_b128 v8, v[40:43] offset:{m*XSTR+4096}")
    a(f"v_and_b32 v8, 15, v0\nv_lshl_add_u32 v11, v8, 2, s{S_LB}")
    a(f"ds_write_b32 v11, v40 offset:{H_N}")
    def za(X, Te, c): return c1(X, 0, Te, c)
    def twiddle1(X):
        for Te in range(2):
            for Td in range(2):
                cr, ci = c1(X,Td,Te,0), c1(X,Td,Te,1)
                tc, ts = TW + ((Td*2+Te)*2)*4, TW + ((Td*2+Te)*2+1)*4
                t = TT + 8*(Td & 1)
                for o in (0, 2):
                    a(f"v_pk_mul_f32 {vr(t+o,2)}, {vr(cr+o,2)}, {vr(tc+o,2)}")
                    a(f"v_pk_mul_f32 {vr(t+4+o,2)}, {vr(ci+o,2)}, {vr(tc+o,2)}")
                for o in (0, 2):
                    a(f"v_pk_fma_f32 {vr(t+o,2)}, {vr(ci+o,2)}, {vr(ts+o,2)}, {vr(t+o,2)}")
                    a(f"v_pk_fma_f32 {vr(t+4+o,2)}, {vr(cr+o,2)}, {vr(ts+o,2)}, {vr(t+4+o,2)} neg_lo:[1,0,0] neg_hi:[1,0,0]")
                for hh in range(2):
                    a(f"v_cvt_pk_bf16_f32 v{za(X,Te,0)+2*Td+hh}, v{t+2*hh}, v{t+2*hh+1}")
                    a(f"v_cvt_pk_bf16_f32 v{za(X,Te,1)+2*Td+hh}, v{t+4+2*hh}, v{t+4+2*hh+1}")
    twiddle1(0)
    k.stamp("s1tw")
    k.check_or_poll("pa", [pa_load], [f"v_cmp_ne_u32 vcc, s{S_TAG}, v14"])
    a(f"v_cmp_ne_u32 vcc, s{S_XCC}, v15")
    a(f"s_or_b32 s{T0}, vcc_lo, vcc_hi\ns_cmp_eq_u32 s{T0}, 0\ns_cselect_b32 s{S_MODE}, 1, 0")
    if FORCE_GLOBAL: a(f"s_mov_b32 s{S_MODE}, 0")
    a(f"s_lshl_b32 s{T0}, s{S_CB}, 8\ns_lshl_b32 s{T1}, s{S_RB}, 4\ns_add_u32 s{T0}, s{T0}, s{T1}\ns_lshl_b32 s{T1}, s{S_W}, 2\ns_add_u32 s{C0+1}, s{T0}, s{T1}")
    a(f"v_mov_b32 v9, s{C0+1}\nv_mov_b32 v10, s{S_TAG}\ns_movk_i32 s{T2}, {FL_F1}")
    def f1sig(sc):
        L = []
        if sc: L += xr_st(sc) + ["s_waitcnt vmcnt(0)"]
        return L + ["s_mov_b64 exec, 1", f"buffer_store_dword v10, v9, {sr(R_FL,4)}, s{T2} offen{sc}", "s_mov_b64 exec, -1"]
    k.dual(f1sig, "f1")
    k.stamp("mode")
    a(f"s_add_u32 m0, s{S_LB}, {H_S+64}")
    a(f"v_add_u32 v9, 4, v{V_L16}")
    for it in range(4):
        k.vmem(f"buffer_load_dwordx4 v9, {sr(RA,4)}, 0 offen offset:{it*1024} lds", "h")
    a("v_mov_b32 v10, 0")
    k.vmem(f"buffer_load_dword v{V_H01}, v10, {sr(RA,4)}, 0 offen", "h")
    twiddle1(1)
    a("s_waitcnt lgkmcnt(0)")
    C2 = 172
    def c2(X, T1_, Te): return C2 + ((X*2+T1_)*2+Te)*4
    for T1_ in range(2):
        for Te in range(2):
            for X in range(2):
                Bc = B2U if X == 0 else B2W
                a(f"v_mfma_f32_16x16x32_bf16 {vr(c2(X,T1_,Te),4)}, {vr(za(X,Te,0),4)}, {vr(Bc+8*T1_,4)}, 0")
                a(f"v_mfma_f32_16x16x32_bf16 {vr(c2(X,T1_,Te),4)}, {vr(za(X,Te,1),4)}, {vr(Bc+8*T1_+4,4)}, {vr(c2(X,T1_,Te),4)}")
    a(f"v_and_b32 v8, 7, v2\nv_and_b32 v9, 1, v3")
    a(f"s_lshl_b32 s{T0}, s{S_W}, 1\ns_sub_u32 s{T1}, 6, s{T0}")
    a(f"v_or_b32 v10, s{T0}, v9\nv_xor_b32 v10, v10, v8\nv_or_b32 v12, s{T1}, v9\nv_xor_b32 v12, v12, v8")
    a(f"v_lshlrev_b32 v8, 1, v2\nv_lshrrev_b32 v9, 1, v3\nv_add_u32 v8, v8, v9\nv_lshlrev_b32 v8, 7, v8")
    a(f"v_lshl_add_u32 v10, v10, 4, v8\nv_lshl_add_u32 v12, v12, 4, v8")
    a(f"v_add_u32 v10, {GST}, v10\nv_add_u32 v12, {GST+8192}, v12")
    for T1_ in range(2):
        for Te in range(2):
            A_, B_ = c2(0,T1_,Te), c2(1,T1_,Te)
            for o in (0, 2):
                a(f"v_pk_add_f32 {vr(TT+o,2)}, {vr(A_+o,2)}, {vr(B_+o,2)} neg_lo:[0,1] neg_hi:[0,1]")
                a(f"v_pk_add_f32 {vr(TT+4+o,2)}, {vr(A_+o,2)}, {vr(B_+o,2)}")
            for hh in range(2):
                a(f"v_cvt_pk_bf16_f32 v{GO+8*T1_+2*Te+hh}, v{TT+2*hh}, v{TT+2*hh+1}")
                a(f"v_cvt_pk_bf16_f32 v{GO+8*T1_+4+2*Te+hh}, v{TT+4+2*hh}, v{TT+4+2*hh+1}")
        a(f"ds_write_b128 v10, {vr(GO+8*T1_,4)} offset:{4096*T1_}")
        a(f"ds_write_b128 v12, {vr(GO+8*T1_+4,4)} offset:{4096*T1_}")
    a(f"s_movk_i32 s{C0}, {FL_F1}")
    f1_load = f"buffer_load_dword v13, v{V_FOFF}, {sr(R_FL,4)}, s{C0} offen sc1"
    k.vmem(f1_load, "f1l")
    a(f"v_lshrrev_b32 v8, 3, v0\nv_and_b32 v9, 7, v0")
    a(f"v_lshrrev_b32 v10, 1, v8\nv_xor_b32 v10, v10, v9")
    a(f"s_lshr_b32 s{T0}, s{S_W}, 1\ns_lshl_b32 s{T0}, s{T0}, 13\ns_and_b32 s{T1}, s{S_W}, 1\ns_lshl_b32 s{T1}, s{T1}, 12\ns_add_u32 s{T0}, s{T0}, s{T1}\ns_add_u32 s{T0}, s{T0}, {GST}")
    a(f"v_lshlrev_b32 v14, 7, v8\nv_add_u32 v14, s{T0}, v14")
    a(f"v_xor_b32 v12, 4, v10\nv_lshl_add_u32 v10, v10, 4, v14\nv_lshl_add_u32 v12, v12, 4, v14")
    a(f"s_lshl_b32 s{T0}, s2, 7\ns_sub_u32 s{T1}, {2045*32}, s{T0}\ns_cmp_ge_u32 s{S_W}, 2\ns_cselect_b32 s{T0}, s{T1}, s{T0}")
    a(f"s_and_b32 s{T1}, s{S_W}, 1\ns_lshl_b32 s{T1}, s{T1}, 21\ns_add_u32 s{T0}, s{T0}, s{T1}")
    a(f"v_lshlrev_b32 v{V_GOFF}, 16, v8\nv_lshl_add_u32 v{V_GOFF}, v9, 4, v{V_GOFF}\nv_add_u32 v{V_GOFF}, s{T0}, v{V_GOFF}")
    a(f"s_cmp_ge_u32 s{S_W}, 2\ns_cselect_b32 s{T0}, 0, 1\ns_or_b32 s{T0}, s{T0}, s2")
    a(f"s_cmp_eq_u32 s{T0}, 0\ns_cselect_b32 s{T0}, 6, 8")
    a(f"v_cmp_le_u32 vcc, s{T0}, v9")
    a(f"v_add_u32 v14, {(1024-2048)*32 & 0xffffffff}, v{V_GOFF}")
    a(f"v_cndmask_b32 v{V_GOFF}, v{V_GOFF}, v14, vcc")
    a("s_waitcnt lgkmcnt(0)")
    a("s_barrier")
    for i in range(4):
        a(f"ds_read_b128 {vr(GO+4*i,4)}, v{10 if (i&1)==0 else 12} offset:{1024*i}")
    k.stamp("s1")
    a(f"v_and_b32 v6, 1, v0\nv_mul_u32_u24 v6, {XSTR}, v6")
    a("v_bfe_u32 v7, v0, 1, 3\nv_lshlrev_b32 v7, 6, v7\nv_sub_u32 v6, v6, v7")
    a("v_lshrrev_b32 v7, 4, v0\nv_lshl_add_u32 v6, v7, 4, v6")
    a(f"s_add_u32 s{T0}, s{S_LB}, {4032-3584}")
    a(f"v_add_u32 v6, s{T0}, v6")
    a(f"v_and_b32 v8, 15, v0\nv_and_b32 v9, 1, v0\nv_mul_u32_u24 v9, {H_N-H_S+4}, v9")
    a("v_lshl_add_u32 v8, v8, 2, v9\nv_lshl_add_u32 v8, v7, 4, v8")
    a(f"s_add_u32 s{T0}, s{S_LB}, {H_S}")
    a(f"v_add_u32 v8, s{T0}, v8")
    a(f"v_add_u32 v5, s{S_LB}, v{V_L16}")
    a(f"s_lshl_b32 s{T0}, s{S_CH}, 12")
    k.srd(RB, S_WS, 4096, add=f"s{T0}")
    a(f"s_cmp_eq_u32 s{S_MODE}, 0\ns_cselect_b32 s{S_ZO}, {4<<20}, 0\ns_add_u32 s{T0}, s{T0}, s{S_ZO}")
    k.srd(RE, S_WS, 4096, add=f"s{T0}")
    k.check_or_poll("f1l", [f1_load], [f"v_cmp_ne_u32 vcc, s{S_TAG}, v13"])
    k.stamp("f1")
    XA, XB = 16, 32
    for it in range(4):
        k.vmem(f"buffer_load_dwordx4 {vr(XA+4*it,4)}, v{V_L16}, {sr(RB,4)}, 0 offen offset:{it*1024} sc1", "xl")
    k.srd(RC, S_WS, 4 << 20, add=WS_G)
    a("s_waitcnt lgkmcnt(0)")
    for i in range(4):
        a(f"s_mov_b32 s{T2}, {i*8*65536}")
        k.vmem(f"buffer_store_dwordx4 {vr(GO+4*i,4)}, v{V_GOFF}, {sr(RC,4)}, s{T2} offen sc1", "g")
    a(f"v_and_b32 v9, 15, v0\nv_cmp_eq_u32 vcc, 15, v9")
    a(f"v_cndmask_b32 v9, 0, v{V_H01}, vcc")
    a(f"ds_write_b32 v11, v9 offset:{H_S}")
    k.wait("xl")
    k.stamp("xl")
    for it in range(4):
        a(f"v_mov_b32_dpp v{XB+it}, v{XA+4*it} wave_shl:1 row_mask:0xf bank_mask:0xf bound_ctrl:0")
        if it < 3:
            a(f"v_readlane_b32 s{T0}, v{XA+4*(it+1)}, 0")
            a(f"v_writelane_b32 v{XB+it}, s{T0}, 63")
    for it in range(4):
        a(f"ds_write_b128 v5, {vr(XA+4*it,4)} offset:{XSTR+it*1024}")
        for i in range(4):
            hi = XA+4*it+i+1 if i < 3 else XB+it
            a(f"v_alignbit_b32 v{44+4*(it&1)+i}, v{hi}, v{XA+4*it+i}, 16")
        a(f"ds_write_b128 v5, {vr(44+4*(it&1),4)} offset:{it*1024}")
    ACC = 16
    SET = [48, 112]
    def xf(s, u): return SET[s] + 4*u
    def hf(s, J): return SET[s] + 32 + 4*J
    def reads(s, jj):
        L = []
        for u in range(8):
            L.append(f"ds_read_b64 {vr(hf(s,u),2)}, v8 offset:{512*u+64*jj}")
            L.append(f"ds_read_b64 {vr(hf(s,u)+2,2)}, v8 offset:{512*u+64*jj+8}")
            L.append(f"ds_read_b128 {vr(xf(s,u),4)}, v6 offset:{512*(7-u)+64*jj}")
        return L
    def mfmas(s, first):
        L = []; seen = set()
        for J in range(8):
            for u in range(8 - J):
                c = u + J
                cin = vr(ACC+4*c,4) if not (first and c not in seen) else "0"
                seen.add(c)
                L.append(f"v_mfma_f32_16x16x32_bf16 {vr(ACC+4*c,4)}, {vr(xf(s,u),4)}, {vr(hf(s,J),4)}, {cin}")
        return L
    a("s_waitcnt lgkmcnt(0)")
    for r in reads(0, 0): a(r)
    k.stamp("preloop")
    f2_addr = [f"v_lshrrev_b32 v9, 2, v0", f"v_lshlrev_b32 v9, 7, v9", f"v_and_b32 v10, 3, v0", f"v_lshl_add_u32 v11, v10, 4, v9"]
    f2_load = f"buffer_load_dwordx4 v[176:179], v11, {sr(R_FL,4)}, s{C0} offen sc1"
    f2_cmp = [f"v_xor_b32 v{176+i}, s{S_TAG}, v{176+i}" for i in range(4)] + ["v_or3_b32 v176, v176, v177, v178", "v_or_b32 v176, v176, v179", "v_cmp_ne_u32 vcc, 0, v176"]
    for jj in range(8):
        s = jj & 1
        a("s_waitcnt lgkmcnt(0)")
        k.stamp(f"jj{jj}")
        if jj == JJ_SIG:
            k.wait("g")
            k.stamp("gdone")
            lb = k.lab("Lf2")
            a(f"v_mov_b32 v9, {LDS_CNT}\nv_mov_b32 v12, 1\nv_mov_b32 v10, s{S_TAG}")
            a("s_mov_b64 exec, 1")
            a("ds_add_rtn_u32 v12, v9, v12")
            a("s_waitcnt lgkmcnt(0)")
            a(f"v_readfirstlane_b32 s{T0}, v12")
            a(f"s_cmp_lg_u32 s{T0}, 3\ns_cbranch_scc1 {lb}")
            a(f"s_lshr_b32 s{T0}, s2, 4\ns_lshl_b32 s{T0}, s{T0}, 7\ns_and_b32 s{T1}, s2, 15\ns_lshl_b32 s{T1}, s{T1}, 2\ns_add_u32 s{T0}, s{T0}, s{T1}\ns_add_u32 s{T0}, s{T0}, {FL_F2}")
            a(f"v_mov_b32 v9, s{T0}")
            k.vmem(f"buffer_store_dword v10, v9, {sr(R_FL,4)}, 0 offen sc1", "f2", optional=True)
            a(f"{lb}:")
            a("s_mov_b64 exec, -1")
        if EARLY and jj == JJ_F2LD:
            lb = k.lab("Le1")
            a(f"s_cmp_lg_u32 s{S_W}, 0\ns_cbranch_scc1 {lb}")
            for x in f2_addr + [f"s_movk_i32 s{C0}, {FL_F2}"]: a(x)
            k.vmem(f2_load, "f2l", optional=True)
            a(f"{lb}:")
        if EARLY and jj == JJ_F2:
            lb = k.lab("Le2")
            a(f"s_cmp_lg_u32 s{S_W}, 0\ns_cbranch_scc1 {lb}")
            a("s_waitcnt vmcnt(0)")
            for x in f2_cmp: a(x)
            a(f"s_or_b32 s{T0}, vcc_lo, vcc_hi\ns_cmp_eq_u32 s{T0}, 0\ns_cselect_b32 s{T0}, 1, 0")
            a(f"v_mov_b32 v9, {LDS_CNT}\nv_mov_b32 v10, s{T0}\nds_write_b32 v9, v10 offset:4")
            a(f"{lb}:")
        R = reads(1 - s, jj + 1) if jj < 7 else []
        M = mfmas(s, jj == 0)
        extra = []
        if jj == 0:
            extra.append([f"s_movk_i32 s{T4}, 0x1000"] + k.srd_lines(RA, S_Q, 4 << 20))
            for t in range(4):
                so = "0" if t < 2 else f"s{T4}"
                extra.append([("q", f"buffer_load_dwordx4 {vr(V_Q+4*t,4)}, v{V_QOFF}, {sr(RA,4)}, {so} offen offset:{(t&1)*2048}{NT}")])
        if jj == 1:
            extra.append([f"s_lshl_b32 s{T0}, s{S_W}, 10", f"s_lshl_b32 s{T1}, s{S_R}, 12", f"s_add_u32 s{T1}, s{T1}, s{T0}"])
            for i, (off, rdep) in enumerate(((TOFF['S2A1'], True), (TOFF['S2TW'], True), (TOFF['S2B2'], False))):
                extra.append([f"s_add_u32 m0, s{T0}, {R3 + 4096*i}", f"s_add_u32 s{T2}, s{T1 if rdep else T0}, {off}",
                              ("t2", f"buffer_load_dwordx4 v{V_L16}, {sr(R_TAB,4)}, s{T2} offen lds")])
        if jj == 5 and WBL2:
            lbw = k.lab("Lwb")
            extra.append([f"s_lshr_b32 s{T2}, s2, 3", f"s_or_b32 s{T2}, s{T2}, s{S_W}", f"s_cmp_lg_u32 s{T2}, 0", f"s_cbranch_scc1 {lbw}", ("wb", "buffer_wbl2 sc1", True), f"{lbw}:"])
        ri = 0; ei = 0
        for m in M:
            a(m)
            if ri < len(R): a(R[ri]); ri += 1
            if ei < len(extra) and (ri >= 8 or not R):
                for t in extra[ei]:
                    if isinstance(t, tuple): k.vmem(t[1], t[0], optional=(len(t) > 2))
                    else: a(t)
                ei += 1
        assert ei == len(extra)
    k.stamp("loop")
    def gd_setup():
        a(f"s_lshl_b32 s{T0}, s{S_E}, 16\ns_add_u32 s{T0}, s{T0}, {WS_G}")
        k.srd(RB, S_WS, 65536, add=f"s{T0}")
        a(f"s_mul_i32 s{T0}, s{S_W}, {16*S2_PIECE}\ns_add_u32 s{T0}, s{T0}, {R2}\ns_lshl_b32 s{T1}, s{S_W}, 14")
    def gd_lines():
        L = []
        for i in range(16):
            L += [f"s_add_u32 m0, s{T0}, {i*S2_PIECE}", f"s_add_u32 s{T2}, s{T1}, {i*1024}", f"buffer_load_dwordx4 v{V_L16}, {sr(RB,4)}, s{T2} offen sc1 lds"]
        return L
    a(f"s_mov_b32 s{S_GD}, 0")
    if EARLY:
        lb = k.lab("Le3")
        a(f"v_mov_b32 v9, {LDS_CNT}\nds_read_b32 v10, v9 offset:4\ns_waitcnt lgkmcnt(0)\nv_readfirstlane_b32 s{S_GD}, v10")
        a(f"s_cmp_eq_u32 s{S_GD}, 0\ns_cbranch_scc1 {lb}")
        gd_setup()
        for x in gd_lines():
            if x.startswith("buffer"): k.vmem(x, "gde", optional=True)
            else: a(x)
        a(f"{lb}:")
    a("v_and_b32 v2, 15, v0\nv_lshrrev_b32 v3, 4, v0")
    a("v_lshlrev_b32 v4, 2, v2\nv_lshl_add_u32 v4, v3, 7, v4")
    a(f"s_add_u32 s{T0}, s{S_LB}, {XSTR+4092-64-3584}")
    a(f"v_sub_u32 v5, s{T0}, v4")
    KV = 48
    for c in range(8):
        a(f"ds_read_b32 v{KV+2*c}, v5 offset:{3584-512*c+64}")
        a(f"ds_read_b32 v{KV+2*c+1}, v5 offset:{3584-512*c}")
    TM = 64; ZS = 80
    for c in range(8):
        if c in (0, 4): a(f"s_waitcnt lgkmcnt({8 if c == 0 else 0})")
        R0, R1 = KV+2*c, KV+2*c+1
        t = TM + 4*(c & 1)
        a(f"v_and_b32 v{t}, 0xffff0000, v{R0}")
        a(f"v_lshlrev_b32 v{t+1}, 16, v{R0}")
        a(f"v_and_b32 v{t+2}, 0xffff0000, v{R1}")
        a(f"v_lshlrev_b32 v{t+3}, 16, v{R1}")
        for j in range(4):
            a(f"v_fmac_f32 v{ACC+4*c+j}, s{S_DV}, v{t+j}")
        a(f"v_cvt_pk_bf16_f32 v{ZS+2*c}, v{ACC+4*c}, v{ACC+4*c+1}")
        a(f"v_cvt_pk_bf16_f32 v{ZS+2*c+1}, v{ACC+4*c+2}, v{ACC+4*c+3}")
    def zt_st(sc):
        L = []
        for c in range(8):
            L.append(f"buffer_store_dword v{ZS+2*c}, v4, {sr(RE,4)}, 0 offen offset:{512*c}{sc}")
            L.append(f"buffer_store_dword v{ZS+2*c+1}, v4, {sr(RE,4)}, 0 offen offset:{512*c+64}{sc}")
        return L
    k.dual(zt_st, "zs")
    k.stamp("zst")
    k.srd(RC, S_OUT, 8 << 20)
    k.wait("zs")
    a(f"v_mov_b32 v10, s{C0+1}\nv_mov_b32 v11, s{S_TAG}\ns_movk_i32 s{T2}, {FL_F3}")
    k.dual(lambda sc: ["s_mov_b64 exec, 1", f"buffer_store_dword v11, v10, {sr(R_FL,4)}, s{T2} offen{sc}", "s_mov_b64 exec, -1"], "f3")
    k.stamp("f3s")
    lb = k.lab("Lf2w")
    a(f"s_cmp_lg_u32 s{S_W}, 0\ns_cbranch_scc1 {lb}")
    for x in f2_addr + [f"s_movk_i32 s{C0}, {FL_F2}"] + k.poll_lines([f2_load], f2_cmp, sleep=F2SLEEP): a(x)
    a(f"{lb}:")
    a("s_barrier")
    k.stamp("f2")
    gd_setup()
    for x in gd_lines():
        if x.startswith("buffer"): k.vmem(x, "gd")
        else: a(x)
    k.srd(RD, S_WS, 4 << 20, add=f"s{S_ZO}")
    a(f"s_movk_i32 s{C0}, {FL_F3}")
    f3_load = f"buffer_load_dword v13, v{V_FOFF}, {sr(R_FL,4)}, s{C0} offen sc1"
    k.vmem(f3_load, "f3l")
    a(f"v_lshrrev_b32 v{V_ZOFF}, 2, v0\nv_lshlrev_b32 v{V_ZOFF}, 12, v{V_ZOFF}\nv_and_b32 v12, 3, v0\nv_lshl_add_u32 v{V_ZOFF}, v12, 4, v{V_ZOFF}")
    a(f"s_lshl_b32 s{C0+2}, s{S_CB}, 18\ns_lshl_b32 s{T0}, s{S_RB}, 8\ns_add_u32 s{C0+2}, s{C0+2}, s{T0}\ns_lshl_b32 s{T0}, s{S_W}, 6\ns_add_u32 s{C0+2}, s{C0+2}, s{T0}")
    a(f"s_mul_i32 s{C0+3}, s{S_W}, {4*S2_PIECE}\ns_add_u32 s{C0+3}, s{C0+3}, {ZTL}")
    A1, TW2, B2 = 16, 32, 96
    a(f"v_add_u32 v5, {R3}, v{V_L16}")
    a("v_bfe_u32 v7, v0, 2, 2\nv_lshl_add_u32 v7, v3, 2, v7")
    a(f"v_mul_u32_u24 v7, {S2_PIECE}, v7")
    a("v_and_b32 v8, 3, v0\nv_lshl_add_u32 v7, v8, 3, v7")
    a(f"s_lshl_b32 s{T3}, s{S_W}, 8\ns_add_u32 s{T0}, s{T3}, {R2}")
    a(f"v_add_u32 v7, s{T0}, v7")
    a(f"s_lshl_b32 s{T0}, s{S_W}, 10\ns_add_u32 s{T0}, s{T0}, {R3+4096}")
    a(f"v_lshl_add_u32 v6, v3, 4, s{T0}")
    a("v_lshlrev_b32 v9, 13, v3\nv_lshl_add_u32 v9, v2, 4, v9")
    a(f"s_add_u32 s{T0}, s{T3}, {ZBUF}")
    a(f"v_add_u32 v9, s{T0}, v9")
    k.wait("gd")
    a("s_barrier")
    k.stamp("s2go")
    P2R, ACC2, BF, t0r, t1r, ur = 96, 128, 192, 216, 220, 228
    lq = []
    def ld(text, tag): a(text); lq.append(tag)
    def lwait(tag):
        idx = max(i for i, t in enumerate(lq) if t == tag)
        a(f"s_waitcnt lgkmcnt({min(15, len(lq) - 1 - idx)})")
    def acc(i, c): return ACC2 + (i*2+c)*4
    def rd(i):
        b = BF + 8*(i % 3)
        for ks in range(2):
            for h in range(2):
                ld(f"ds_read_b64_tr_b16 {vr(b+4*ks+2*h,2)}, v7 offset:{(32*ks+16*h)*S2_PIECE+i*32}", f"rd{i}")
    def tw_rd(i):
        for m in (2*i, 2*i+1): ld(f"ds_read_b128 {vr(TW2+4*m,4)}, v6 offset:{64*m}", f"tw{i}")
    def mf(i):
        b = BF + 8*(i % 3)
        for c in range(2):
            a(f"v_mfma_f32_16x16x32_bf16 {vr(acc(i,c),4)}, {vr(A1+4*c,4)}, {vr(b,4)}, 0")
        for c in range(2):
            a(f"v_mfma_f32_16x16x32_bf16 {vr(acc(i,c),4)}, {vr(A1+8+4*c,4)}, {vr(b+4,4)}, {vr(acc(i,c),4)}")
    def twid(i):
        cr, ci = acc(i,0), acc(i,1)
        tc, ts = TW2 + 8*i, TW2 + 8*i + 4
        t = t0r if (i & 1) == 0 else t1r
        for o in (0, 2):
            a(f"v_pk_mul_f32 {vr(t+o,2)}, {vr(cr+o,2)}, {vr(tc+o,2)}")
            a(f"v_pk_mul_f32 {vr(ur+o,2)}, {vr(ci+o,2)}, {vr(tc+o,2)}")
        for o in (0, 2):
            a(f"v_pk_fma_f32 {vr(t+o,2)}, {vr(ci+o,2)}, {vr(ts+o,2)}, {vr(t+o,2)}")
            a(f"v_pk_fma_f32 {vr(cr+o,2)}, {vr(cr+o,2)}, {vr(ts+o,2)}, {vr(ur+o,2)} neg_lo:[1,0,0] neg_hi:[1,0,0]")
    def pack(ip):
        for j in range(4):
            a(f"v_cvt_pk_bf16_f32 v{P2R+(j*2+0)*4+ip}, v{t0r+j}, v{t1r+j}")
            a(f"v_cvt_pk_bf16_f32 v{P2R+(j*2+1)*4+ip}, v{acc(2*ip,0)+j}, v{acc(2*ip+1,0)+j}")
    for f in range(4): ld(f"ds_read_b128 {vr(A1+4*f,4)}, v5 offset:{1024*f}", "a1")
    rd(0); rd(1); tw_rd(0); tw_rd(1)
    for i in range(8):
        if i == ZI:
            k.check_or_poll("f3l", [f3_load], [f"v_cmp_ne_u32 vcc, s{S_TAG}, v13"])
            k.stamp("f3")
            for p in range(4):
                a(f"s_add_u32 m0, s{C0+3}, {p*S2_PIECE}\ns_add_u32 s{T2}, s{C0+2}, {p*65536}")
                k.vmem(f"buffer_load_dwordx4 v{V_ZOFF}, {sr(RD,4)}, s{T2} offen sc1 lds", "zd")
        lwait(f"rd{i}")
        mf(i)
        if i + 2 < 8: rd(i + 2)
        if i + 2 < 8: tw_rd(i + 2)
        if i >= 2:
            lwait(f"tw{i-2}")
            twid(i - 2)
            if (i - 2) & 1: pack((i - 2) >> 1)
    for f in range(4): ld(f"ds_read_b128 {vr(A1+4*f,4)}, v5 offset:{8192+1024*f}", "b2")
    B2 = A1
    lwait("tw7")
    twid(6); twid(7); pack(3)
    for j in range(4):
        for c in range(2):
            a(f"ds_write_b128 v9, {vr(P2R+(j*2+c)*4,4)} offset:{j*2048+c*1024}")
    a(f"s_lshl_b32 s{T0}, s{S_W}, 13\ns_add_u32 s{T0}, s{T0}, {ZBUF}")
    a(f"v_add_u32 v10, s{T0}, v{V_L16}")
    a("v_lshrrev_b32 v11, 2, v0\nv_lshlrev_b32 v11, 18, v11\nv_and_b32 v12, 3, v0\nv_lshl_add_u32 v11, v12, 3, v11")
    a("v_lshlrev_b32 v12, 6, v12\nv_and_b32 v13, 60, v0\nv_or_b32 v12, v12, v13")
    a(f"s_lshl_b32 s{T0}, s{S_R}, 4\ns_lshl_b32 s{T1}, s{S_W}, 2\ns_add_u32 s{T0}, s{T0}, s{T1}\ns_lshl_b32 s{T0}, s{T0}, 12")
    a(f"s_lshl_b32 s{T1}, s{S_E}, 5\ns_add_u32 s{T0}, s{T0}, s{T1}\ns_add_u32 s{T3}, s{T0}, 2048")
    a("s_waitcnt lgkmcnt(0)")
    a("s_barrier")
    k.stamp("s2b")
    ZF = 32
    for jj in range(4):
        for c in range(2):
            a(f"ds_read_b128 {vr(ZF+(jj*2+c)*4,4)}, v10 offset:{jj*2048+c*1024}")
    C2b = 64
    for jj in range(4):
        a(f"s_waitcnt lgkmcnt({6-2*jj})")
        for T1_ in range(2):
            d = C2b + (jj*2+T1_)*4
            a(f"v_mfma_f32_16x16x32_bf16 {vr(d,4)}, {vr(ZF+(jj*2)*4,4)}, {vr(B2+8*T1_,4)}, 0")
            a(f"v_mfma_f32_16x16x32_bf16 {vr(d,4)}, {vr(ZF+(jj*2+1)*4,4)}, {vr(B2+8*T1_+4,4)}, {vr(d,4)}")
    O = 96
    for jj in range(4):
        for T1_ in range(2):
            d = C2b + (jj*2+T1_)*4; o = O + 2*(jj*2+T1_)
            a(f"v_cvt_pk_bf16_f32 v{o}, v{d}, v{d+1}")
            a(f"v_cvt_pk_bf16_f32 v{o+1}, v{d+2}, v{d+3}")
            a(f"ds_bpermute_b32 v{o}, v12, v{o}\nds_bpermute_b32 v{o+1}, v12, v{o+1}")
    k.stamp("o2")
    def o2st(lg):
        for jj in range(4):
            for T1_ in range(2):
                o = O + 2*(jj*2+T1_)
                if lg: a(f"s_waitcnt lgkmcnt({14 - 2*(jj*2+T1_)})")
                a(f"s_add_u32 s{T1}, s{T3}, {jj*4096 + T1_*(16*64*4096)}")
                k.vmem(f"buffer_store_dwordx2 {vr(o,2)}, v11, {sr(RC,4)}, s{T1} offen{O2SC}", "o2")
    if O2FIRST: o2st(True)
    a(f"v_and_b32 v8, 7, v0\nv_lshrrev_b32 v9, 1, v8\nv_mul_u32_u24 v9, {S2_PIECE}, v9\nv_and_b32 v8, 1, v8\nv_lshl_add_u32 v9, v8, 9, v9")
    a(f"v_lshrrev_b32 v8, 3, v0\nv_lshl_add_u32 v9, v8, 3, v9\nv_add_u32 v9, s{C0+3}, v9")
    k.wait("zd")
    if WBL2 == 2:
        lbw = k.lab("Lwb")
        a(f"s_lshr_b32 s{T2}, s2, 3\ns_or_b32 s{T2}, s{T2}, s{S_W}\ns_cmp_lg_u32 s{T2}, 0\ns_cbranch_scc1 {lbw}\nbuffer_wbl2 sc1\n{lbw}:")
    ZR = 112
    for c in range(8):
        a(f"ds_read_b64 {vr(ZR+2*c,2)}, v9 offset:{64*c}")
    a("s_waitcnt lgkmcnt(0)")
    k.stamp("zl")
    QF0, OUT3 = 128, 144
    for t in range(4):
        for m in range(4):
            zf = QF0 + 4*(m & 1); qf = zf + 2
            for h in range(2):
                c = 2*m + h
                src = ZR + 2*c + (t >> 1)
                if t & 1: a(f"v_and_b32 v{zf+h}, 0xffff0000, v{src}")
                else:     a(f"v_lshlrev_b32 v{zf+h}, 16, v{src}")
            a(f"v_lshlrev_b32 v{qf}, 16, v{V_Q+4*t+m}")
            a(f"v_and_b32 v{qf+1}, 0xffff0000, v{V_Q+4*t+m}")
            a(f"v_pk_mul_f32 {vr(qf,2)}, {vr(qf,2)}, {vr(zf,2)}")
            a(f"v_cvt_pk_bf16_f32 v{OUT3+4*t+m}, v{qf}, v{qf+1}")
        a(f"s_mov_b32 s{T1}, {t*4096}")
        k.vmem(f"buffer_store_dwordx4 {vr(OUT3+4*t,4)}, v{V_OOFF}, {sr(RC,4)}, s{T1} offen{O3SC}", "o3")
    k.stamp("p3")
    if not O2FIRST: o2st(False)
    lb = k.lab("Lne")
    a(f"s_or_b32 s{T0}, s2, s{S_W}\ns_cmp_lg_u32 s{T0}, 0\ns_cbranch_scc1 {lb}")
    a(f"v_mov_b32 v8, {FL_EPOCH}\nv_mov_b32 v9, s{S_TAG}")
    a("s_mov_b64 exec, 1")
    a(f"buffer_store_dword v9, v8, {sr(R_FL,4)}, 0 offen")
    a("s_mov_b64 exec, -1")
    a(f"{lb}:")
    if PROF:
        k.stamp("fin0")
        a("s_waitcnt vmcnt(0)")
        k.stamp("fin")
        a(f"s_memrealtime s[76:77]")
        a("s_waitcnt lgkmcnt(0)")
        a(f"s_add_u32 s{C0}, s{S_WS}, {64<<20}\ns_addc_u32 s{C0+1}, s{S_WS+1}, 0")
        a(f"s_lshl_b32 s{T0}, s{S_SIG}, 6\nv_mov_b32 v0, s{T0}")
        a("s_mov_b64 exec, 1")
        for i in range(k.nstamp):
            a(f"s_sub_u32 s{T1}, s{ST0+2*i}, s{ST0}\nv_mov_b32 v4, s{T1}\nglobal_store_dword v0, v4, s[{C0}:{C0+1}] offset:{4*i}\ns_nop 1")
        a(f"v_mov_b32 v4, s78\nglobal_store_dword v0, v4, s[{C0}:{C0+1}] offset:48\ns_nop 1")
        a(f"v_mov_b32 v4, s76\nglobal_store_dword v0, v4, s[{C0}:{C0+1}] offset:52\ns_nop 1")
        a(f"v_mov_b32 v4, {k.nstamp}\nglobal_store_dword v0, v4, s[{C0}:{C0+1}] offset:56\ns_nop 1")
        a(f"s_lshl_b32 s{T1}, s{S_GD}, 1\ns_or_b32 s{T1}, s{T1}, s{S_MODE}\ns_min_u32 s{T1}, s{T1}, 3")
        a(f"v_mov_b32 v4, s{T1}\nglobal_store_dword v0, v4, s[{C0}:{C0+1}] offset:60")
        if E("DBGOUT"):
            lbd = k.lab("Ldbg")
            a(f"s_load_dwordx2 s[{C0+2}:{C0+3}], s[0:1], 96\ns_waitcnt lgkmcnt(0)")
            a(f"s_lshl_b32 s{T0}, s{S_SIG}, 0\ns_cmp_lg_u32 s{S_SIG}, {int(E('DBGOUT'))}\ns_cbranch_scc1 {lbd}")
            a("v_mov_b32 v0, 0")
            for i in range(k.nstamp):
                a(f"s_sub_u32 s{T1}, s{ST0+2*i}, s{ST0}\nv_mov_b32 v4, s{T1}\nglobal_store_dword v0, v4, s[{C0+2}:{C0+3}] offset:{4*i}\ns_nop 1")
            a(f"s_sub_u32 s{T1}, s76, s78\nv_mov_b32 v4, s{T1}\nglobal_store_dword v0, v4, s[{C0+2}:{C0+3}] offset:60")
            a(f"{lbd}:")
        print("stamps:", k.names)
    a("s_endpgm")
    return k.a.lines + k.tail.lines + ["L_end:", "s_endpgm"]

def main(out_path):
    lines = fix_hazards(build())
    hdr = open(os.path.join(os.path.dirname(__file__), "header.txt")).read().rstrip("\n").split("\n")
    L = list(hdr)
    L.append(f"; @launch grid=(256,1,1) block=(256,1,1) lds={LDS_BYTES}")
    L += ['.amdgcn_target "amdgcn-amd-amdhsa--gfx950"', ".text", f".globl {KNAME}", ".p2align 8", f".type {KNAME},@function", f"{KNAME}:"]
    L += lines
    L += ["L_code_end:", ".p2align 8", ".type L_tables,@object", "L_tables:"] + TAB_LINES + [".size L_tables, .-L_tables"]
    L += ['.section .rodata,"a"', ".p2align 6", f".amdhsa_kernel {KNAME}", "  .amdhsa_next_free_vgpr 256", "  .amdhsa_next_free_sgpr 102",
          "  .amdhsa_accum_offset 256", "  .amdhsa_group_segment_fixed_size 0", "  .amdhsa_kernarg_size 112",
          "  .amdhsa_user_sgpr_count 2", "  .amdhsa_user_sgpr_kernarg_segment_ptr 1", "  .amdhsa_system_sgpr_workgroup_id_x 1",
          "  .amdhsa_float_denorm_mode_32 3", ".end_amdhsa_kernel"]
    open(out_path, "w").write("\n".join(L) + "\n")

if __name__ == "__main__":
    main(sys.argv[1] if len(sys.argv) > 1 else f"cdna_kernels/{NAME}.s")
```
